```python
import torch

def _softmax(x, axis=-1):
    return torch.softmax(x, dim=axis)
def _gelu(x):
    return torch.nn.functional.gelu(x, approximate="tanh")
def _silu(x):
    return torch.nn.functional.silu(x)
def _sigmoid(x):
    return torch.sigmoid(x)
def _layernorm(x, axis=-1, eps=1e-5):
    m = x.mean(dim=axis, keepdim=True)
    v = x.var(dim=axis, keepdim=True, unbiased=False)
    return (x - m) / torch.sqrt(v + eps)
def _scatter_add(tgt, idx, src, axis=0):
    return tgt.clone().index_add_(axis, idx, src)
def _segment_sum(src, seg, n):
    out = torch.zeros((n,) + src.shape[1:], dtype=src.dtype)
    return out.index_add_(0, seg, src)
def _pad(x, pw):
    flat = tuple(v for pair in reversed(pw) for v in pair)
    return torch.nn.functional.pad(x, flat)

kernel_name = 'sequential_preLN__ssm_conv_s4d__mixer_s_mlp__prompt'

def setup_inputs():

    _w = (lambda a: (lambda t: t.to(torch.bfloat16) if t.is_floating_point() else t)(torch.as_tensor(a)))
    def _A_setup():
        Bsz, L, D, N = 1, 2048, 640, 128
        return {
            "u": _w((lambda *s: torch.randn(*s, dtype=torch.bfloat16) * 0.05)(Bsz, L, D)),
            "log_A_real": _w((lambda *s: torch.randn(*s, dtype=torch.bfloat16) * 6.4)(D, N) * 0.5),
            "A_imag": _w((lambda *s: torch.randn(*s, dtype=torch.bfloat16) * 0.05)(D, N) * 3.14),
            "C_real": _w((lambda *s: torch.randn(*s, dtype=torch.bfloat16) * 0.05)(D, N) / N ** 0.5),
            "C_imag": _w((lambda *s: torch.randn(*s, dtype=torch.bfloat16) * 0.05)(D, N) / N ** 0.5),
            "log_dt": _w((lambda *s: torch.randn(*s, dtype=torch.bfloat16) * 0.05)(D) * 0.5 - 4.0),
            "D_skip": _w((lambda *s: torch.randn(*s, dtype=torch.bfloat16) * 0.05)(D)),
        }
    _A_in = _A_setup()

    def _B_setup():
        B, S, D, F = 1, 2048, 640, 1728
        return {
            "x":  _w((lambda *s: torch.randn(*s, dtype=torch.bfloat16) * 0.05)(B, S, D)),
            "w1": _w((lambda *s: torch.randn(*s, dtype=torch.bfloat16) * 6.4)(D, D) * (D ** -0.5)),
            "w2": _w((lambda *s: torch.randn(*s, dtype=torch.bfloat16) * 6.4)(D, D) * (D ** -0.5)),
            "w3": _w((lambda *s: torch.randn(*s, dtype=torch.bfloat16) * 6.4)(D, F) * (D ** -0.5)),
            "w4": _w((lambda *s: torch.randn(*s, dtype=torch.bfloat16) * 6.4)(F, D) * (F ** -0.5)),
        }
    _B_in = _B_setup()

    return {
        "A_u": _A_in["u"],
        "A_log_A_real": _A_in["log_A_real"],
        "A_A_imag": _A_in["A_imag"],
        "A_C_real": _A_in["C_real"],
        "A_C_imag": _A_in["C_imag"],
        "A_log_dt": _A_in["log_dt"],
        "A_D_skip": _A_in["D_skip"],
        "B_x": _B_in["x"],
        "B_w1": _B_in["w1"],
        "B_w2": _B_in["w2"],
        "B_w3": _B_in["w3"],
        "B_w4": _B_in["w4"],
    }

def reference(A_u, A_log_A_real, A_A_imag, A_C_real, A_C_imag, A_log_dt, A_D_skip, B_x, B_w1, B_w2, B_w3, B_w4):
    def _A_ref(u, log_A_real, A_imag, C_real, C_imag, log_dt, D_skip):
        L = u.shape[1]
        dt = torch.exp(log_dt)
        A = -torch.exp(log_A_real) + 1j * A_imag
        C = (C_real + 1j * C_imag) * dt[:, None]
        pos = (lambda x, dt: x.to(dt))(torch.arange(L), log_dt.dtype)
        P = torch.exp((A * dt[:, None])[:, :, None] * pos[None, None, :])
        K = 2.0 * torch.einsum("dn,dnl->dl", C, P).real
        L2 = 2 * L
        u_t = (lambda x, *d: x.permute(*d))(u, 0, 2, 1)
        Kf = (lambda x, *a, **k: torch.fft.rfft(x.float(), *a, **k))(K, L2)
        Uf = (lambda x, *a, **k: torch.fft.rfft(x.float(), *a, **k))(u_t, L2)
        y = (lambda x, *a, **k: torch.fft.irfft(x, *a, **k).to(torch.bfloat16))(Uf * Kf[None, :, :], L2)[:, :, :L]
        y = (lambda x, *d: x.permute(*d))(y, 0, 2, 1)
        return y + u * D_skip[None, None, :]

    def _B_ref(x, w1, w2, w3, w4):
        B, S, D = x.shape
        h = _gelu(_layernorm(x, axis=-1) @ w1)
        c = D // 4
        g0 = _pad(h[:, :, 0*c:1*c], ((0, 0), (1, 0), (0, 0)))[:, :S, :]
        g1 = _pad(h[:, :, 1*c:2*c], ((0, 0), (0, 1), (0, 0)))[:, 1:, :]
        g2 = _pad(h[:, :, 2*c:3*c], ((0, 0), (2, 0), (0, 0)))[:, :S, :]
        g3 = _pad(h[:, :, 3*c:   ], ((0, 0), (0, 2), (0, 0)))[:, 2:, :]
        hs = torch.concatenate([g0, g1, g2, g3], axis=-1) @ w2
        x1 = x + hs
        h2 = _gelu(_layernorm(x1, axis=-1) @ w3) @ w4
        return x1 + h2

    x = A_u
    h = x + _A_ref(_layernorm(x, axis=-1), A_log_A_real, A_A_imag, A_C_real, A_C_imag, A_log_dt, A_D_skip)
    h2 = h + _B_ref(_layernorm(h, axis=-1), B_w1, B_w2, B_w3, B_w4)
    return h2
```

```python
import re

TRANS = ('v_exp_f32', 'v_log_f32', 'v_rcp_f32', 'v_rsq_f32', 'v_sqrt_f32', 'v_sin_f32', 'v_cos_f32',
         'v_rcp_iflag_f32', 'v_exp_f16', 'v_log_f16', 'v_rcp_f16', 'v_rsq_f16', 'v_sqrt_f16')


def regs_of(op):
    op = op.strip()
    op = op.lstrip('-')
    if op.startswith('|'):
        op = op.strip('|')
    m = re.match(r'^(neg|abs)\((.*)\)$', op)
    if m:
        op = m.group(2)
    m = re.match(r'^([vsa])(\d+)$', op)
    if m:
        return {(m.group(1), int(m.group(2)))}
    m = re.match(r'^([vsa])\[(\d+):(\d+)\]$', op)
    if m:
        return {(m.group(1), i) for i in range(int(m.group(2)), int(m.group(3)) + 1)}
    if op == 'vcc':
        return {('s', 106), ('s', 107)}
    if op == 'vcc_lo':
        return {('s', 106)}
    if op == 'vcc_hi':
        return {('s', 107)}
    if op == 'exec':
        return {('s', 126), ('s', 127)}
    if op == 'exec_lo':
        return {('s', 126)}
    if op == 'exec_hi':
        return {('s', 127)}
    if op == 'm0':
        return {('s', 124)}
    return set()


class Ins:
    __slots__ = ('text', 'mn', 'ops', 'mods', 'kind', 'w', 'r', 'srcC', 'srcAB', 'passes', 'label', 'target',
                 'dpp', 'wide_store', 'ldsdma', 'states')

    def __init__(self, text):
        self.text = text
        self.label = None
        self.target = None
        self.w = set(); self.r = set(); self.srcC = set(); self.srcAB = set()
        self.passes = 0; self.dpp = False; self.wide_store = set(); self.ldsdma = False
        self.states = 1
        t = text.split(';')[0].strip()
        if t.endswith(':'):
            self.label = t[:-1]; self.kind = 'label'; self.mn = ''; self.states = 0
            return
        if t == '' or t.startswith('.'):
            self.kind = 'none'; self.mn = ''; self.states = 0
            return
        parts = t.split(None, 1)
        mn = parts[0]
        self.mn = mn
        rest = parts[1] if len(parts) > 1 else ''
        ops = []; depth = 0; cur = ''
        for ch in rest:
            if ch in '[(':
                depth += 1
            if ch in '])':
                depth -= 1
            if ch == ',' and depth == 0:
                ops.append(cur.strip()); cur = ''
            else:
                cur += ch
        if cur.strip():
            ops.append(cur.strip())
        mods = ''
        if ops:
            last = ops[-1].split(None, 1)
            if len(last) > 1:
                ops[-1] = last[0]; mods = last[1]
        self.ops = ops; self.mods = mods
        R = [regs_of(o) for o in ops]
        base = re.sub(r'_(e32|e64|dpp|sdwa)$', '', mn)
        if mn.startswith('v_mfma') or mn.startswith('v_smfmac'):
            self.kind = 'mfma'
            self.w = R[0]; self.srcAB = R[1] | R[2]; self.srcC = R[3]; self.r = self.srcAB | self.srcC
            self.passes = 8 if '32x32' in mn else 4
        elif mn.startswith('v_'):
            self.kind = 'valu'
            if base in TRANS:
                self.kind = 'trans'
            if base.startswith('v_dot'):
                self.kind = 'dot'
            if 'row_' in mods or 'quad_perm' in mods or 'wave_' in mods or mn.endswith('_dpp'):
                self.dpp = True
            if base.startswith('v_cmp'):
                if base.startswith('v_cmpx'):
                    raise Exception('avoid v_cmpx')
                self.w = R[0]; self.r = set().union(*R[1:])
            elif base.startswith('v_permlane') and 'swap' in base:
                self.w = R[0] | R[1]; self.r = R[0] | R[1]; self.kind = 'permlane'
            elif base in ('v_readfirstlane_b32', 'v_readlane_b32'):
                self.kind = 'readlane'
                self.w = R[0]; self.r = set().union(*R[1:])
            elif base in ('v_add_co_u32', 'v_sub_co_u32', 'v_subrev_co_u32', 'v_addc_co_u32', 'v_subb_co_u32',
                          'v_div_scale_f32'):
                self.w = R[0] | R[1]; self.r = set().union(*R[2:])
            elif base == 'v_nop':
                pass
            else:
                self.w = R[0]; self.r = set().union(*R[1:]) if len(R) > 1 else set()
                if base.startswith('v_fmac') or base.startswith('v_mac') or base.startswith('v_dot2c') or \
                        base.startswith('v_pk_fmac') or self.dpp or base == 'v_writelane_b32' or base.startswith('v_dot4c'):
                    self.r |= R[0]
                if base == 'v_cndmask_b32' and len(ops) == 3:
                    self.r |= regs_of('vcc')
        elif mn.startswith('ds_'):
            self.kind = 'ds'
            if mn.startswith('ds_read') or mn.startswith('ds_bpermute') or mn.startswith('ds_permute') or \
                    mn.startswith('ds_swizzle') or '_rtn' in mn:
                self.w = R[0]; self.r = set().union(*R[1:])
                if 'd16' in mn:
                    self.r |= R[0]
            else:
                self.r = set().union(*R)
        elif mn.startswith('buffer_') or mn.startswith('global_') or mn.startswith('flat_'):
            self.kind = 'vmem'
            islds = (' lds' in (' ' + mods)) or '_lds_' in mn
            if 'load' in mn and not islds:
                self.w = R[0]; self.r = set().union(*R[1:])
                if 'd16' in mn:
                    self.r |= R[0]
            else:
                self.r = set().union(*R)
                if islds:
                    self.ldsdma = True
                    self.r |= regs_of('m0')
                if 'store' in mn and ('x3' in mn or 'x4' in mn):
                    self.wide_store = R[0] if mn.startswith('buffer_') else R[1]
        elif mn.startswith('s_'):
            self.kind = 'salu'
            if mn == 's_nop':
                self.states = int(ops[0], 0) + 1
            elif mn.startswith('s_cbranch') or mn == 's_branch':
                self.kind = 'branch'; self.target = ops[0]
            elif mn.startswith('s_cmp') or mn.startswith('s_waitcnt') or mn in ('s_barrier', 's_endpgm', 's_setprio',
                                                                             's_sleep') or mn.startswith('s_bitcmp'):
                self.r = set().union(*R) if R else set()
            elif mn.startswith('s_load') or mn.startswith('s_buffer_load'):
                self.kind = 'smem'
                self.w = R[0]; self.r = set().union(*R[1:])
            else:
                self.w = R[0]; self.r = set().union(*R[1:]) if len(R) > 1 else set()
                if 'saveexec' in mn:
                    self.w |= regs_of('exec'); self.r |= regs_of('exec')
        else:
            raise Exception('unknown instr ' + text)


VALUK = ('valu', 'trans', 'dot', 'permlane', 'readlane')


def need(p, c):
    n = 0
    pv = {x for x in p.w if x[0] in 'va'}
    ps = {x for x in p.w if x[0] == 's'}
    if p.kind in VALUK:
        if pv:
            if c.kind == 'mfma' and (pv & c.r):
                n = max(n, 2)
            if c.dpp and (pv & c.r):
                n = max(n, 2)
            if c.kind == 'permlane' and (pv & c.r):
                n = max(n, 2)
            if c.kind == 'readlane' and (pv & c.r):
                n = max(n, 1)
            if p.kind == 'trans' and c.kind in VALUK and c.kind != 'trans' and (pv & c.r):
                n = max(n, 1)
            if p.kind == 'trans' and c.kind == 'trans' and (pv & c.r):
                n = max(n, 1)
            if p.kind == 'dot':
                if c.kind == 'dot' and c.mn == p.mn:
                    ab = set().union(*[regs_of(o) for o in c.ops[1:3]])
                    if pv & ab:
                        n = max(n, 3)
                elif (pv & (c.r | c.w)):
                    n = max(n, 3)
        if ps:
            if c.kind in VALUK and (ps & c.r):
                n = max(n, 4 if c.kind == 'readlane' else 2)
            if c.kind == 'vmem' and (ps & c.r):
                n = max(n, 5)
            if c.kind == 'mfma' and (ps & regs_of('exec')):
                n = max(n, 4)
    if p.kind == 'mfma':
        big = p.passes == 8
        if c.kind == 'mfma':
            if p.w & c.srcAB:
                n = max(n, 12 if big else 8)
            if p.w & c.srcC:
                if not (p.w == c.srcC and p.passes == c.passes):
                    n = max(n, 10 if big else 6)
            elif p.w & c.w:
                n = max(n, 12 if big else 8)
        elif c.kind in VALUK or c.kind in ('vmem', 'ds'):
            if p.w & (c.r | c.w):
                n = max(n, 12 if big else 8)
            if c.kind in VALUK and (p.srcC & c.w):
                n = max(n, 7 if big else 3)
    if p.kind == 'salu' and (('s', 124) in p.w) and c.ldsdma:
        n = max(n, 1)
    if p.wide_store and (p.wide_store & c.w):
        n = max(n, 2 if c.kind in VALUK + ('mfma',) else 1)
    return n


class Asm:
    def __init__(self):
        self.ins = []

    def __call__(self, text):
        for line in text.split('\n'):
            line = line.strip()
            if line:
                self.ins.append(Ins(line))

    def label(self, name):
        self.ins.append(Ins(name + ':'))

    def pad(self):
        HIST = 16
        out = []
        labels = {}
        src = self.ins
        for i, x in enumerate(src):
            if x.label:
                labels[x.label] = i

        def required(hist, c):
            dist = 0
            req = 0
            for p in reversed(hist):
                if p.states == 0:
                    continue
                nn = need(p, c)
                if nn > dist:
                    req = max(req, nn - dist)
                dist += p.states
                if dist >= HIST:
                    break
            return req

        for i, x in enumerate(src):
            if x.kind in ('label', 'none'):
                out.append(x); continue
            req = required(out[-40:], x)
            if x.kind == 'branch':
                j = labels.get(x.target)
                assert j is not None, x.target
                for extra in range(0, 16):
                    h = out[-40:] + ([Ins('s_nop %d' % (extra - 1))] if extra else []) + [x]
                    ok = True
                    d = 0
                    k = j
                    hh = list(h)
                    while d < HIST and k < len(src):
                        y = src[k]; k += 1
                        if y.states == 0:
                            continue
                        dist = 0
                        for p in reversed(hh):
                            if p.states == 0:
                                continue
                            if any(p is q for q in h):
                                if need(p, y) > dist:
                                    ok = False
                            dist += p.states
                            if dist >= HIST:
                                break
                        if not ok:
                            break
                        hh.append(y); d += y.states
                        if y.mn in ('s_branch', 's_endpgm'):
                            break
                    if ok:
                        req = max(req, extra)
                        break
            while req > 0:
                k = min(req, 16)
                out.append(Ins('s_nop %d' % (k - 1)))
                req -= k
            out.append(x)
        self.ins = out

    def text(self):
        o = []
        for x in self.ins:
            if x.kind == 'label':
                o.append(x.text)
            else:
                o.append('    ' + x.text)
        return '\n'.join(o) + '\n'

    def max_vgpr(self):
        m = 0
        for x in self.ins:
            for (t, n) in (x.w | x.r):
                if t == 'v':
                    m = max(m, n)
        return m + 1


def vr(a, n=1):
    return 'v%d' % a if n == 1 else 'v[%d:%d]' % (a, a + n - 1)


def sr(a, n=1):
    return 's%d' % a if n == 1 else 's[%d:%d]' % (a, a + n - 1)


import struct


def f2u(x):
    return struct.unpack('<I', struct.pack('<f', x))[0]


def fl(x):
    return '0x%08x' % f2u(x)
```

```python
from asmlib import *
from gen import *

KCS = 4384
UB = 8 * KCS
K2_LDS = UB + 80 * 80


def unpack2(a, d, s):
    a(f'v_lshlrev_b32 v{d}, 16, v{s}')
    a(f'v_and_b32 v{d + 1}, 0xffff0000, v{s}')


def gen_k2():
    a = Asm()
    a.label('k2_kernel')
    a(f'''
    s_cmp_ge_u32 s2, {D}
    s_cbranch_scc1 k2_exit
    s_load_dwordx2 s[4:5], s[0:1], {KA['ws']}
    s_load_dwordx2 s[6:7], s[0:1], {KA['dsk']}
    v_mov_b32 v1, v0
    v_lshrrev_b32 v2, 6, v0
    v_and_b32 v0, 63, v0
    v_readfirstlane_b32 s3, v2
    v_lshlrev_b32 v2, 4, v1
    s_lshl_b32 s20, s2, 12
    s_mul_i32 s21, s2, {KRS}
    s_add_u32 s22, s20, {SZ_LD}
    s_lshl_b32 s23, s2, 1
    v_mov_b32 v3, s23
    s_waitcnt lgkmcnt(0)
    ''')
    srd_from(a, 8, 4, UT, 3 * SZ_LD)
    srd_from(a, 12, 4, KR, D * KRS)
    srd_from(a, 16, 6, 0, D * 2)
    KS = 48
    VU = 8; VX = 12; DSK = 16
    for rho in range(8):
        a(f'buffer_load_dwordx4 {vr(KS + 4 * rho, 4)}, v2, s[12:15], s21 offen offset:{30 - 2 * rho}')
    a(f'buffer_load_dwordx4 {vr(VU, 4)}, v2, s[8:11], s20 offen')
    a(f'buffer_load_dwordx4 {vr(VX, 4)}, v2, s[8:11], s22 offen')
    a(f'buffer_load_ushort v{DSK}, v3, s[16:19], 0 offen')
    a(f'''
    v_mov_b32 v20, 0
    v_mov_b32 v21, 0
    v_mov_b32 v22, 0
    v_mov_b32 v23, 0
    v_lshrrev_b32 v4, 2, v1
    v_and_b32 v5, 3, v1
    s_movk_i32 s24, {KCS}
    v_mul_lo_u32 v6, v4, s24
    v_lshl_add_u32 v6, v5, 4, v6
    v_cmp_gt_u32 vcc, 32, v1
    s_and_saveexec_b64 s[26:27], vcc
    ds_write_b128 v6, v[20:23] offset:{257 * 16}
    s_mov_b64 exec, -1
    v_cmp_gt_u32 vcc, 80, v1
    s_and_saveexec_b64 s[26:27], vcc
    ds_write_b128 v2, v[20:23] offset:{UB}
    s_mov_b64 exec, -1
    s_movk_i32 s24, 80
    v_mul_lo_u32 v6, v4, s24
    v_lshl_add_u32 v6, v5, 4, v6
    ''')
    VA = 24; VB = 25; VP = 26; VQ = 27
    a(f'''
    v_and_b32 v7, 7, v0
    s_movk_i32 s25, {KCS}
    v_mul_lo_u32 v{VA}, v7, s25
    v_lshrrev_b32 v7, 4, v0
    v_bfe_u32 v17, v0, 3, 1
    v_sub_u32 v17, v7, v17
    v_lshl_add_u32 v{VA}, v17, 4, v{VA}
    s_lshl_b32 s25, s3, 8
    s_sub_u32 s25, {256 * 16 - 103 * 32}, s25
    v_add_u32 v{VA}, s25, v{VA}
    v_and_b32 v17, 15, v0
    v_mul_lo_u32 v{VB}, v17, s24
    v_lshl_add_u32 v{VB}, v7, 4, v{VB}
    s_mul_i32 s25, s3, 320
    s_sub_u32 s25, {UB + 13 * 80}, s25
    v_add_u32 v{VB}, s25, v{VB}
    s_movk_i32 s25, 144
    v_mul_lo_u32 v{VP}, v17, s25
    v_lshl_add_u32 v{VP}, v7, 4, v{VP}
    s_mul_i32 s26, s3, 9216
    v_add_u32 v{VP}, s26, v{VP}
    v_mul_lo_u32 v{VQ}, v4, s25
    v_lshl_add_u32 v{VQ}, v5, 5, v{VQ}
    ''')
    for rho in range(8):
        a(f's_waitcnt vmcnt({10 - rho})')
        a(f'ds_write_b128 v2, {vr(KS + 4 * rho, 4)} offset:{rho * KCS + 16}')
    a('s_waitcnt vmcnt(2)')
    a(f'ds_write_b128 v6, {vr(VU, 4)} offset:{UB + 16 * 80}')
    a('s_waitcnt lgkmcnt(0)')
    a('s_barrier')
    FR = [32, 80]
    ACC = 128

    def reads(dd):
        fb = FR[dd & 1]
        for g in range(4):
            a(f'ds_read_b128 {vr(fb + 32 + 4 * g, 4)}, v{VB} offset:{(16 * g + 3 - dd) * 80}')
            for bh in range(2):
                a(f'ds_read_b128 {vr(fb + (2 * g + bh) * 4, 4)}, v{VA} offset:{(103 - (2 * dd + 32 * g + bh)) * 32}')
    reads(0)
    for dd in range(4):
        if dd < 3:
            reads(dd + 1)
            a('s_waitcnt lgkmcnt(12)')
        else:
            a('s_waitcnt lgkmcnt(0)')
        fb = FR[dd & 1]
        for g in range(4):
            for s in range(4 - g):
                for bh in range(2):
                    ac = ACC + (2 * (g + s) + bh) * 4
                    c = '0' if (dd == 0 and g == 0) else vr(ac, 4)
                    a(f'v_mfma_f32_16x16x32_bf16 {vr(ac, 4)}, {vr(fb + (2 * g + bh) * 4, 4)}, {vr(fb + 32 + 4 * s, 4)}, {c}')
    a('s_barrier')
    for be in range(4):
        for bh in range(2):
            a(f'ds_write_b128 v{VP}, {vr(ACC + (2 * be + bh) * 4, 4)} offset:{be * 2304 + bh * 64}')
    a('s_waitcnt lgkmcnt(0)')
    a('s_barrier')
    R = 32
    for w in range(4):
        a(f'ds_read_b128 {vr(R + 8 * w, 4)}, v{VQ} offset:{w * 9216}')
        a(f'ds_read_b128 {vr(R + 8 * w + 4, 4)}, v{VQ} offset:{w * 9216 + 16}')
    a(f'''
    s_waitcnt vmcnt(0)
    v_lshlrev_b32 v{DSK}, 16, v{DSK}
    s_add_u32 s22, s20, {2 * SZ_LD}
    s_waitcnt lgkmcnt(0)
    ''')
    for e in range(0, 8, 2):
        a(f'v_pk_add_f32 {vr(R + e, 2)}, {vr(R + e, 2)}, {vr(R + 8 + e, 2)}')
        a(f'v_pk_add_f32 {vr(R + 16 + e, 2)}, {vr(R + 16 + e, 2)}, {vr(R + 24 + e, 2)}')
    for e in range(0, 8, 2):
        a(f'v_pk_add_f32 {vr(R + e, 2)}, {vr(R + e, 2)}, {vr(R + 16 + e, 2)}')
    T = 64; T2 = 66; P = 68; O = 72
    for e in range(0, 8, 2):
        k = e // 2
        a(f'v_cvt_pk_bf16_f32 v{P}, v{R + e}, v{R + e + 1}')
        unpack2(a, R + e, P)
        unpack2(a, T, VU + k)
        a(f'v_pk_mul_f32 {vr(T, 2)}, {vr(T, 2)}, {vr(DSK, 2)} op_sel_hi:[1,0]')
        a(f'v_cvt_pk_bf16_f32 v{P}, v{T}, v{T + 1}')
        unpack2(a, T, P)
        a(f'v_pk_add_f32 {vr(T, 2)}, {vr(T, 2)}, {vr(R + e, 2)}')
        a(f'v_cvt_pk_bf16_f32 v{P}, v{T}, v{T + 1}')
        unpack2(a, T, P)
        unpack2(a, T2, VX + k)
        a(f'v_pk_add_f32 {vr(T, 2)}, {vr(T, 2)}, {vr(T2, 2)}')
        a(f'v_cvt_pk_bf16_f32 v{O + k}, v{T}, v{T + 1}')
    a(f'buffer_store_dwordx4 {vr(O, 4)}, v2, s[8:11], s22 offen')
    a.label('k2_exit')
    a('s_endpgm')
    return a


def more_kernels():
    ks = [('k2_kernel', gen_k2(), D, 256, K2_LDS)]
    try:
        from gen3 import gemm_kernels
        ks += gemm_kernels()
    except ImportError:
        pass
    return ks
```

```python
from asmlib import *
from gen import *
from gen2 import unpack2

GK = -2.0 * 0.7978845608028654 * LOG2E


def gelu(a, x, t):
    a(f'v_mul_f32 v{t}, v{x}, v{x}')
    a(f'v_fmaak_f32 v{t}, v{t}, v{KG1}, {fl(GK)}') if False else None
    a(f'v_fma_f32 v{t}, v{t}, s90, s91') if False else None


def gelu4(a, X, T):
    for i in range(4):
        a(f'v_mul_f32 v{T + i}, s90, v{X + i}')
    for i in range(4):
        a(f'v_fmaak_f32 v{T + i}, v{T + i}, v{X + i}, {fl(GK)}')
    for i in range(4):
        a(f'v_mul_f32 v{T + i}, v{T + i}, v{X + i}')
    for i in range(4):
        a(f'v_exp_f32 v{T + i}, v{T + i}')
    for i in range(4):
        a(f'v_add_f32 v{T + i}, 1.0, v{T + i}')
    for i in range(4):
        a(f'v_rcp_f32 v{T + i}, v{T + i}')
    for i in range(4):
        a(f'v_mul_f32 v{X + i}, v{X + i}, v{T + i}')


def round4(a, X, P):
    a(f'v_cvt_pk_bf16_f32 v{P}, v{X}, v{X + 1}')
    a(f'v_cvt_pk_bf16_f32 v{P + 1}, v{X + 2}, v{X + 3}')
    unpack2(a, X, P)
    unpack2(a, X + 2, P + 1)


def xreduce(a, v, t):
    a(f'v_mov_b32 v{t}, v{v}')
    a(f'v_permlane32_swap_b32 v{v}, v{t}')
    a(f'v_add_f32 v{v}, v{v}, v{t}')
    a(f'v_mov_b32 v{t}, v{v}')
    a(f'v_permlane16_swap_b32 v{v}, v{t}')
    a(f'v_add_f32 v{v}, v{v}, v{t}')


def ln_scale(a, d, var, t):
    bf16r(a, d, var)
    a(f'v_add_f32 v{d}, {fl(1e-5)}, v{d}')
    bf16r(a, d, d)
    a(f'v_sqrt_f32 v{d}, v{d}')
    bf16r(a, d, d)


def wg_map(a):
    a('''
    s_and_b32 s20, s2, 7
    s_lshr_b32 s21, s2, 3
    s_lshr_b32 s22, s21, 3
    s_lshl_b32 s20, s20, 2
    s_add_u32 s22, s22, s20
    s_and_b32 s23, s21, 7
    ''')


ST = 81920
CSB = ST + 1024
G12_LDS = CSB + 512


def gen_g12(mode):
    nm = 'k3' if mode == 1 else 'k4'
    a = Asm()
    a.label(nm + '_kernel')
    a(f'''
    s_cmp_ge_u32 s2, 256
    s_cbranch_scc1 {nm}_exit
    s_load_dwordx2 s[4:5], s[0:1], {KA['ws']}
    v_lshrrev_b32 v2, 6, v0
    v_and_b32 v0, 63, v0
    v_readfirstlane_b32 s3, v2
    ''')
    wg_map(a)
    a(f'''
    s_mul_i32 s24, s23, 5
    s_add_u32 s24, s24, s3
    s_mul_i32 s25, s24, 20480
    v_lshlrev_b32 v3, 4, v0
    s_mov_b32 s90, {fl(GK * 0.044715)}
    s_waitcnt lgkmcnt(0)
    ''')
    if mode == 1:
        srd_from(a, 8, 4, HT, SZ_LD)
        srd_from(a, 12, 4, W1P, D * D * 2)
        srd_from(a, 16, 4, GS, 3 * SZ_LD)
    else:
        srd_from(a, 8, 4, GS, SZ_LD)
        srd_from(a, 12, 4, W2P, D * D * 2)
        srd_from(a, 16, 4, XPE, 2 * SZ_LD)
    VDE = 4; VDO = 5; VB = 8; ONES = 12; VS = 13; VQ = 14; VC = 15
    W = 32; BF = 112; ACC = 144
    if mode == 1:
        a(f'''
        v_lshrrev_b32 v6, 3, v0
        v_and_b32 v7, 7, v0
        v_bfe_u32 v16, v0, 4, 1
        v_lshlrev_b32 v16, 2, v16
        v_xor_b32 v7, v7, v16
        v_lshlrev_b32 v{VDE}, 12, v6
        v_lshl_add_u32 v{VDE}, v7, 4, v{VDE}
        v_xor_b32 v{VDO}, 32, v{VDE}
        s_lshl_b32 s26, s3, 17
        s_lshl_b32 s27, s22, 7
        s_add_u32 s26, s26, s27
        s_lshl_b32 s27, s3, 12
        ''')
    else:
        a(f'''
        s_mul_i32 s26, s22, 81920
        s_lshl_b32 s27, s3, 10
        s_add_u32 s26, s26, s27
        ''')
    for c in range(4):
        for i in range(4):
            if mode == 1:
                a(f's_add_u32 m0, s27, {c * 20480 + i * 1024}')
                a(f's_add_u32 s28, s26, {c * 655360 + i * 32768}')
                a(f'buffer_load_dwordx4 v{VDO if i & 1 else VDE}, s[8:11], s28 offen lds')
            else:
                a(f's_add_u32 m0, s27, {c * 5120 + i * 20480}')
                a(f's_add_u32 s28, s26, {c * 5120 + i * 20480}')
                a(f'buffer_load_dwordx4 v3, s[8:11], s28 offen lds')
        for s in range(5 * c, 5 * c + 5):
            a(f's_add_u32 s28, s25, {s * 1024}')
            a(f'buffer_load_dwordx4 {vr(W + 4 * s, 4)}, v3, s[12:15], s28 offen')
    for i in range(4):
        a(f's_add_u32 s{30 + i}, s3, {i}')
        a(f's_and_b32 s{30 + i}, s{30 + i}, 3')
    a('v_and_b32 v6, 15, v0')
    a('v_lshrrev_b32 v7, 4, v0')
    if mode == 1:
        a(f'''
        v_lshrrev_b32 v16, 2, v6
        v_lshl_add_u32 v16, v7, 3, v16
        v_lshlrev_b32 v16, 7, v16
        v_and_b32 v17, 3, v6
        v_lshl_add_u32 v16, v17, 3, v16
        v_lshrrev_b32 v17, 3, v6
        v_lshlrev_b32 v17, 1, v17
        v_and_b32 v18, 1, v7
        v_or_b32 v17, v17, v18
        v_mov_b32 v{ONES}, 0x3f803f80
        v_mov_b32 v{VS}, 0
        v_mov_b32 v{VQ}, 0
        v_mov_b32 v{VC}, 0
        ''')
        for i in range(4):
            a(f'v_xor_b32 v18, s{30 + i}, v17')
            a(f'v_lshl_add_u32 v{VB + i}, v18, 5, v16')
    else:
        for i in range(4):
            a(f's_mul_i32 s28, s{30 + i}, 20480')
            a(f'v_add_u32 v{VB + i}, s28, v3')
    a(f'''
    s_and_b32 s28, s24, 1
    s_lshl_b32 s28, s28, 9
    s_lshr_b32 s29, s24, 1
    s_lshl_b32 s29, s29, 10
    s_add_u32 s28, s28, s29
    v_lshrrev_b32 v19, 1, v7
    v_lshlrev_b32 v19, 8, v19
    v_and_b32 v18, 1, v7
    v_lshl_add_u32 v19, v18, 3, v19
    v_add_u32 v19, s28, v19
    v_lshl_add_u32 v20, v6, 4, v19
    s_lshl_b32 s29, s22, 2
    ''')
    for i in range(4):
        a(f's_add_u32 s{34 + i}, s29, s{30 + i}')
        a(f's_mul_i32 s{34 + i}, s{34 + i}, 20480')
    XP = 24
    if mode == 2:
        for i in range(4):
            a(f'buffer_load_dwordx2 {vr(XP + 2 * i, 2)}, v20, s[16:19], s{34 + i} offen')
    extra = 4 if mode == 2 else 0

    state = {'hi': False}

    def reads(s):
        fb = BF + 16 * (s & 1)
        if mode == 1:
            if s >= 16 and not state['hi']:
                state['hi'] = True
                for i in range(4):
                    a(f'v_add_u32 v{VB + i}, 0x10000, v{VB + i}')
            off = (s % 16) * 4096
            for i in range(4):
                a(f'ds_read_b64_tr_b16 {vr(fb + 4 * i, 2)}, v{VB + i} offset:{off}')
                a(f'ds_read_b64_tr_b16 {vr(fb + 4 * i + 2, 2)}, v{VB + i} offset:{off + 512}')
        else:
            for i in range(4):
                a(f'ds_read_b128 {vr(fb + 4 * i, 4)}, v{VB + i} offset:{s * 1024}')
    nrd = 8 if mode == 1 else 4
    for s in range(20):
        if s % 5 == 0:
            c = s // 5
            a(f's_waitcnt vmcnt({27 - 9 * c + extra})')
            a('s_barrier')
            reads(s)
        if (s + 1) % 5:
            reads(s + 1)
            a(f's_waitcnt lgkmcnt({nrd})')
        else:
            a('s_waitcnt lgkmcnt(0)')
        fb = BF + 16 * (s & 1)
        for i in range(4):
            c_ = '0' if s == 0 else vr(ACC + 4 * i, 4)
            a(f'v_mfma_f32_16x16x32_bf16 {vr(ACC + 4 * i, 4)}, {vr(W + 4 * s, 4)}, {vr(fb + 4 * i, 4)}, {c_}')
            if mode == 1:
                a(f'v_dot2_f32_bf16 v{VS}, v{fb + i}, v{ONES}, v{VS}')
                a(f'v_dot2_f32_bf16 v{VQ}, v{fb + i}, v{fb + i}, v{VQ}')
                a(f'v_dot2_f32_bf16 v{VC}, v{W + 4 * s + i}, v{ONES}, v{VC}')
    T = 32
    if mode == 1:
        xreduce(a, VS, T); xreduce(a, VQ, T); xreduce(a, VC, T)
        a(f'''
        s_lshl_b32 s28, s3, 6
        s_add_u32 s28, s28, {CSB}
        v_lshl_add_u32 v{T}, v6, 2, s28
        ds_write_b32 v{T}, v{VC}
        v_lshl_add_u32 v{T}, v7, 4, s28
        ''')
        CS = 36
        a(f'ds_read_b128 {vr(CS, 4)}, v{T}')
        M1 = 40; R1 = 41; C1 = 42; C2 = 43; MEAN = 44; VAR = 45; S1 = 46; S2 = 47; M2 = 48
        a(f'''
        v_mul_f32 v{MEAN}, {fl(1.0 / 640)}, v{VS}
        v_mul_f32 v{VAR}, {fl(1.0 / 640)}, v{VQ}
        v_fma_f32 v{VAR}, -v{MEAN}, v{MEAN}, v{VAR}
        v_max_f32 v{VAR}, 0, v{VAR}
        ''')
        bf16r(a, M1, MEAN)
        ln_scale(a, S1, VAR, T)
        a(f'''
        v_rcp_f32 v{R1}, v{S1}
        v_sub_f32 v{M2}, v{MEAN}, v{M1}
        v_mul_f32 v{M2}, v{M2}, v{R1}
        v_mul_f32 v{VAR}, v{VAR}, v{R1}
        v_mul_f32 v{VAR}, v{VAR}, v{R1}
        ''')
        bf16r(a, M2, M2)
        ln_scale(a, S2, VAR, T)
        a(f'''
        v_fma_f32 v{C1}, v{M2}, v{S1}, v{M1}
        v_mul_f32 v{C2}, v{S1}, v{S2}
        v_rcp_f32 v{C2}, v{C2}
        s_lshl_b32 s28, s30, 8
        s_add_u32 s28, s28, {ST}
        v_lshl_add_u32 v{T}, v6, 4, s28
        ds_write_b128 v{T}, {vr(M1, 4)}
        s_waitcnt lgkmcnt(0)
        s_barrier
        ''')
        SS = 52
        HH = 68
        a(f'''
        v_lshrrev_b32 v16, 2, v6
        v_lshl_add_u32 v16, v7, 2, v16
        s_lshl_b32 s28, s24, 4
        v_add_u32 v16, s28, v16
        v_lshlrev_b32 v16, 7, v16
        v_and_b32 v17, 3, v6
        v_lshl_add_u32 v16, v17, 3, v16
        v_lshrrev_b32 v17, 3, v6
        v_lshlrev_b32 v17, 1, v17
        v_lshrrev_b32 v18, 1, v7
        v_or_b32 v17, v17, v18
        v_lshlrev_b32 v21, 4, v6
        ''')
        for i in range(4):
            a(f's_lshl_b32 s28, s{30 + i}, 8')
            a(f's_add_u32 s28, s28, {ST}')
            a(f'v_add_u32 v{T}, s28, v21')
            a(f'ds_read_b128 {vr(SS + 4 * i, 4)}, v{T}')
            a(f'v_xor_b32 v18, s{30 + i}, v17')
            a(f'v_lshl_add_u32 v{T + 1}, v18, 5, v16')
            a(f'ds_read_b64_tr_b16 {vr(HH + 2 * i, 2)}, v{T + 1}')
        a(f'''
        s_lshr_b32 s28, s23, 1
        s_lshr_b32 s29, s28, 1
        s_add_u32 s29, s29, 1
        s_sub_u32 s38, 0, s29
        s_bitcmp1_b32 s28, 0
        s_cselect_b32 s38, s38, s29
        s_lshl_b32 s39, s22, 6
        s_add_u32 s39, s39, s38
        s_mov_b32 s40, {HE - GS}
        s_mov_b32 s41, {XPE - GS}
        s_waitcnt lgkmcnt(0)
        ''')
        X = 76; TT = 80; P = 84; A0 = 86; A1 = 87
        for i in range(4):
            ac = ACC + 4 * i; ss = SS + 4 * i
            for ii in range(4):
                a(f'v_fma_f32 v{X + ii}, -v{ss + 2}, v{CS + ii}, v{ac + ii}')
            for ii in range(4):
                a(f'v_mul_f32 v{X + ii}, v{X + ii}, v{ss + 3}')
            round4(a, X, P)
            gelu4(a, X, TT)
            a(f'v_cvt_pk_bf16_f32 v{P}, v{X}, v{X + 1}')
            a(f'v_cvt_pk_bf16_f32 v{P + 1}, v{X + 2}, v{X + 3}')
            a(f'''
            s_lshl_b32 s28, s{30 + i}, 4
            s_add_u32 s28, s28, s39
            v_add_u32 v{A0}, s28, v6
            v_cmp_gt_u32 vcc, 2048, v{A0}
            v_and_b32 v{A0}, 2047, v{A0}
            v_lshrrev_b32 v{A1}, 4, v{A0}
            v_and_b32 v{A0}, 15, v{A0}
            v_mul_u32_u24 v{A1}, 20480, v{A1}
            v_lshl_add_u32 v{A0}, v{A0}, 4, v19
            v_add_u32 v{A0}, v{A0}, v{A1}
            v_cndmask_b32 v{P}, 0, v{P}, vcc
            v_cndmask_b32 v{P + 1}, 0, v{P + 1}, vcc
            buffer_store_dwordx2 {vr(P, 2)}, v{A0}, s[16:19], 0 offen
            s_add_u32 s28, s{34 + i}, s40
            buffer_store_dwordx2 {vr(HH + 2 * i, 2)}, v20, s[16:19], s28 offen
            ''')
            unpack2(a, X, HH + 2 * i)
            unpack2(a, X + 2, HH + 2 * i + 1)
            for ii in range(4):
                a(f'v_sub_f32 v{X + ii}, v{X + ii}, v{ss}')
            round4(a, X, P + 4)
            for ii in range(4):
                a(f'v_mul_f32 v{X + ii}, v{X + ii}, v{ss + 1}')
            a(f'v_cvt_pk_bf16_f32 v{P + 4}, v{X}, v{X + 1}')
            a(f'v_cvt_pk_bf16_f32 v{P + 5}, v{X + 2}, v{X + 3}')
            a(f's_add_u32 s28, s{34 + i}, s41')
            a(f'buffer_store_dwordx2 {vr(P + 4, 2)}, v20, s[16:19], s28 offen')
            P = 84 if P != 84 else 92
            A0 = P + 2; A1 = P + 3
    else:
        X = 76; Y = 80; P = 84
        a(f's_mov_b32 s40, {X1 - XPE}')
        a('s_waitcnt vmcnt(0)')
        for i in range(4):
            ac = ACC + 4 * i
            round4(a, ac, P)
            unpack2(a, Y, XP + 2 * i)
            unpack2(a, Y + 2, XP + 2 * i + 1)
            for ii in range(4):
                a(f'v_add_f32 v{X + ii}, v{ac + ii}, v{Y + ii}')
            a(f'v_cvt_pk_bf16_f32 v{P + 2 + 2 * i}, v{X}, v{X + 1}')
            a(f'v_cvt_pk_bf16_f32 v{P + 3 + 2 * i}, v{X + 2}, v{X + 3}')
            a(f's_add_u32 s28, s{34 + i}, s40')
            a(f'buffer_store_dwordx2 {vr(P + 2 + 2 * i, 2)}, v20, s[16:19], s28 offen')
    a.label(nm + '_exit')
    a('s_endpgm')
    return a


def gemm_kernels():
    ks = [('k3_kernel', gen_g12(1), 256, 320, G12_LDS), ('k4_kernel', gen_g12(2), 256, 320, G12_LDS)]
    try:
        from gen4 import gemm34
        ks += gemm34()
    except ImportError:
        pass
    return ks
```

```python
from asmlib import *
from gen import *
from gen2 import unpack2
from gen3 import *

G3_ST = 81920
G3_CS = G3_ST + 512
G3_LDS = G3_CS + 7 * 128


def gen_g3():
    nm = 'k5'
    a = Asm()
    a.label(nm + '_kernel')
    a(f'''
    s_cmp_ge_u32 s2, 256
    s_cbranch_scc1 {nm}_exit
    s_load_dwordx2 s[4:5], s[0:1], {KA['ws']}
    v_lshrrev_b32 v2, 6, v0
    v_and_b32 v0, 63, v0
    v_readfirstlane_b32 s3, v2
    ''')
    wg_map(a)
    a(f'''
    s_mul_i32 s24, s23, 13
    s_min_u32 s25, s23, 4
    s_add_u32 s24, s24, s25
    s_lshl_b32 s25, s3, 1
    s_add_u32 s24, s24, s25
    s_mul_i32 s25, s24, 20480
    v_lshlrev_b32 v3, 4, v0
    s_mov_b32 s90, {fl(GK * 0.044715)}
    s_mul_i32 s26, s22, 81920
    s_waitcnt lgkmcnt(0)
    ''')
    srd_from(a, 8, 4, X1, SZ_LD)
    srd_from(a, 12, 4, W3P, D * F * 2)
    srd_from(a, 16, 4, H3, L * F * 2)
    for i in range(3):
        a(f'''
        s_mul_i32 s27, s3, 3
        s_add_u32 s27, s27, {i}
        s_min_u32 s27, s27, 19
        s_mul_i32 s28, s27, 13
        s_lshr_b32 s28, s28, 6
        s_mul_i32 s28, s28, 15
        s_add_u32 s27, s27, s28
        s_lshl_b32 s{40 + i}, s27, 10
        ''')
    VB = 8; ONES = 12; VS = 13; VQ = 14; VC = 15
    W = 32; BF = 192; ACC = 224
    for c in range(4):
        for i in range(3):
            a(f's_add_u32 m0, s{40 + i}, {c * 5120}')
            a(f's_add_u32 s28, m0, s26')
            a(f'buffer_load_dwordx4 v3, s[8:11], s28 offen lds')
        for s in range(5 * c, 5 * c + 5):
            for j in range(2):
                a(f's_add_u32 s28, s25, {s * 1024 + j * 20480}')
                a(f'buffer_load_dwordx4 {vr(W + 8 * s + 4 * j, 4)}, v3, s[12:15], s28 offen')
    for i in range(4):
        a(f's_add_u32 s{30 + i}, s3, {i}')
        a(f's_and_b32 s{30 + i}, s{30 + i}, 3')
    a(f'''
    v_and_b32 v6, 15, v0
    v_lshrrev_b32 v7, 4, v0
    v_mov_b32 v{ONES}, 0x3f803f80
    v_mov_b32 v{VS}, 0
    v_mov_b32 v{VQ}, 0
    v_mov_b32 v{VC}, 0
    v_mov_b32 v{VC + 1}, 0
    ''')
    for i in range(4):
        a(f's_mul_i32 s28, s{30 + i}, 20480')
        a(f'v_add_u32 v{VB + i}, s28, v3')

    def reads(s):
        fb = BF + 16 * (s & 1)
        for i in range(4):
            a(f'ds_read_b128 {vr(fb + 4 * i, 4)}, v{VB + i} offset:{s * 1024}')
    for s in range(20):
        if s % 5 == 0:
            c = s // 5
            a(f's_waitcnt vmcnt({39 - 13 * c})')
            a('s_barrier')
            reads(s)
        if (s + 1) % 5:
            reads(s + 1)
            a(f's_waitcnt lgkmcnt(4)')
        else:
            a('s_waitcnt lgkmcnt(0)')
        fb = BF + 16 * (s & 1)
        for i in range(4):
            for j in range(2):
                ac = ACC + 16 * j + 4 * i
                c_ = '0' if s == 0 else vr(ac, 4)
                a(f'v_mfma_f32_16x16x32_bf16 {vr(ac, 4)}, {vr(W + 8 * s + 4 * j, 4)}, {vr(fb + 4 * i, 4)}, {c_}')
                if j == 0:
                    a(f'v_dot2_f32_bf16 v{VS}, v{fb + i}, v{ONES}, v{VS}')
                    a(f'v_dot2_f32_bf16 v{VC}, v{W + 8 * s + i}, v{ONES}, v{VC}')
                else:
                    a(f'v_dot2_f32_bf16 v{VQ}, v{fb + i}, v{fb + i}, v{VQ}')
                    a(f'v_dot2_f32_bf16 v{VC + 1}, v{W + 8 * s + 4 + i}, v{ONES}, v{VC + 1}')
    T = 32
    xreduce(a, VS, T); xreduce(a, VQ, T); xreduce(a, VC, T); xreduce(a, VC + 1, T)
    CS = 36
    a(f'''
    s_lshl_b32 s28, s3, 7
    s_add_u32 s28, s28, {G3_CS}
    v_lshl_add_u32 v{T}, v6, 2, s28
    ds_write_b32 v{T}, v{VC}
    ds_write_b32 v{T}, v{VC + 1} offset:64
    v_lshl_add_u32 v{T}, v7, 4, s28
    ds_read_b128 {vr(CS, 4)}, v{T}
    ds_read_b128 {vr(CS + 4, 4)}, v{T} offset:64
    ''')
    M = 44; R = 45; MEAN = 46; VAR = 47; S1 = 48
    a(f'''
    v_mul_f32 v{MEAN}, {fl(1.0 / 640)}, v{VS}
    v_mul_f32 v{VAR}, {fl(1.0 / 640)}, v{VQ}
    v_fma_f32 v{VAR}, -v{MEAN}, v{MEAN}, v{VAR}
    v_max_f32 v{VAR}, 0, v{VAR}
    ''')
    bf16r(a, M, MEAN)
    ln_scale(a, S1, VAR, T)
    a(f'''
    v_rcp_f32 v{R}, v{S1}
    s_lshl_b32 s28, s30, 7
    s_add_u32 s28, s28, {G3_ST}
    v_lshl_add_u32 v{T}, v6, 3, s28
    ds_write_b64 v{T}, {vr(M, 2)}
    s_waitcnt lgkmcnt(0)
    s_barrier
    v_lshlrev_b32 v21, 3, v6
    ''')
    SS = 52
    for i in range(4):
        a(f's_lshl_b32 s28, s{30 + i}, 7')
        a(f's_add_u32 s28, s28, {G3_ST}')
        a(f'v_add_u32 v{T}, s28, v21')
        a(f'ds_read_b64 {vr(SS + 2 * i, 2)}, v{T}')
    a(f'''
    v_lshrrev_b32 v19, 1, v7
    v_lshlrev_b32 v19, 8, v19
    v_and_b32 v18, 1, v7
    v_lshl_add_u32 v19, v18, 3, v19
    v_lshl_add_u32 v20, v6, 4, v19
    s_lshl_b32 s29, s22, 2
    ''')
    for i in range(4):
        a(f's_add_u32 s{34 + i}, s29, s{30 + i}')
        a(f's_mul_i32 s{34 + i}, s{34 + i}, {54 * 1024}')
    a('s_waitcnt lgkmcnt(0)')
    X = 64; TT = 68; P = 72
    for j in range(2):
        if j == 1:
            a(f'''
            s_cmp_lt_u32 s3, 6
            s_cbranch_scc1 {nm}_t2
            s_cmp_ge_u32 s23, 4
            s_cbranch_scc1 {nm}_exit
            ''')
            a.label(nm + '_t2')
            a('s_add_u32 s24, s24, 1')
        a(f'''
        s_and_b32 s28, s24, 1
        s_lshl_b32 s28, s28, 9
        s_lshr_b32 s29, s24, 1
        s_lshl_b32 s29, s29, 10
        s_add_u32 s38, s28, s29
        ''')
        for i in range(4):
            ac = ACC + 16 * j + 4 * i; ss = SS + 2 * i
            for ii in range(4):
                a(f'v_fma_f32 v{X + ii}, -v{ss}, v{CS + 4 * j + ii}, v{ac + ii}')
            for ii in range(4):
                a(f'v_mul_f32 v{X + ii}, v{X + ii}, v{ss + 1}')
            round4(a, X, TT)
            gelu4(a, X, TT)
            a(f'v_cvt_pk_bf16_f32 v{P}, v{X}, v{X + 1}')
            a(f'v_cvt_pk_bf16_f32 v{P + 1}, v{X + 2}, v{X + 3}')
            a(f's_add_u32 s28, s{34 + i}, s38')
            a(f'buffer_store_dwordx2 {vr(P, 2)}, v20, s[16:19], s28 offen')
            P += 2
    a.label(nm + '_exit')
    a('s_endpgm')
    return a


G4_LDS = 81920
RING = 3


def gen_g4():
    nm = 'k6'
    a = Asm()
    a.label(nm + '_kernel')
    a(f'''
    s_cmp_ge_u32 s2, 256
    s_cbranch_scc1 {nm}_exit
    s_load_dwordx2 s[4:5], s[0:1], {KA['ws']}
    s_load_dwordx2 s[6:7], s[0:1], {KA['out']}
    v_lshrrev_b32 v2, 6, v0
    v_and_b32 v0, 63, v0
    v_readfirstlane_b32 s3, v2
    ''')
    wg_map(a)
    a(f'''
    s_mul_i32 s24, s23, 5
    s_mul_i32 s25, s3, 13
    s_min_u32 s26, s3, 2
    s_add_u32 s25, s25, s26
    s_lshl_b32 s25, s25, 10
    v_lshlrev_b32 v3, 4, v0
    v_add_u32 v4, s25, v3
    s_lshl_b32 s29, s22, 2
    s_waitcnt lgkmcnt(0)
    ''')
    srd_from(a, 8, 4, H3, L * F * 2)
    srd_from(a, 12, 4, W4P, D * F * 2)
    srd_from(a, 16, 4, HE, 3 * SZ_LD)
    srd_from(a, 44, 6, 0, SZ_LD)
    for j in range(5):
        a(f's_add_u32 s{30 + j}, s24, {j}')
        a(f's_mul_i32 s{30 + j}, s{30 + j}, {54 * 1024}')
    for i in range(4):
        a(f's_add_u32 s{36 + i}, s29, {i}')
        a(f's_mul_i32 s{36 + i}, s{36 + i}, {54 * 1024}')
    a(f'''
    s_cmp_lt_u32 s3, 2
    s_mov_b32 s40, 0x40000000
    s_cselect_b32 s40, 1024, s40
    v_and_b32 v6, 15, v0
    v_lshrrev_b32 v7, 4, v0
    v_lshrrev_b32 v19, 1, v7
    v_lshlrev_b32 v19, 8, v19
    v_and_b32 v18, 1, v7
    v_lshl_add_u32 v19, v18, 3, v19
    v_lshl_add_u32 v20, v6, 4, v19
    s_add_u32 s41, s29, s3
    s_mul_i32 s41, s41, 20480
    ''')
    EH = 216; EX = 226
    for j in range(5):
        a(f'''
        s_add_u32 s27, s24, {j}
        s_and_b32 s28, s27, 1
        s_lshl_b32 s28, s28, 9
        s_lshr_b32 s27, s27, 1
        s_lshl_b32 s27, s27, 10
        s_add_u32 s27, s27, s28
        s_add_u32 s27, s27, s41
        buffer_load_dwordx2 {vr(EH + 2 * j, 2)}, v20, s[16:19], s27 offen
        s_add_u32 s27, s27, {X1 - HE}
        buffer_load_dwordx2 {vr(EX + 2 * j, 2)}, v20, s[16:19], s27 offen
        ''')
    ACC = 24; FB = 104
    NIT = 14

    def loads(it):
        fb = FB + 36 * (it % RING)
        if it > 0:
            a(f'v_add_u32 v4, {"s40" if it == NIT - 1 else "1024"}, v4')
        for j in range(5):
            a(f'buffer_load_dwordx4 {vr(fb + 4 * j, 4)}, v4, s[12:15], s{30 + j} offen')
        for i in range(4):
            a(f'buffer_load_dwordx4 {vr(fb + 20 + 4 * i, 4)}, v4, s[8:11], s{36 + i} offen')
    for it in range(RING - 1):
        loads(it)
    for it in range(NIT):
        nxt = it + RING - 1
        if nxt < NIT:
            loads(nxt)
        pend = min(NIT - 1, it + RING - 1) - it
        a(f's_waitcnt vmcnt({9 * pend})')
        fb = FB + 36 * (it % RING)
        for i in range(4):
            for j in range(5):
                ac = ACC + 4 * (5 * i + j)
                c_ = '0' if it == 0 else vr(ac, 4)
                a(f'v_mfma_f32_16x16x32_bf16 {vr(ac, 4)}, {vr(fb + 4 * j, 4)}, {vr(fb + 20 + 4 * i, 4)}, {c_}')
    a(f'''
    s_mul_i32 s27, s3, 20480
    v_add_u32 v5, s27, v3
    s_mul_i32 s27, s3, 5120
    v_add_u32 v8, s27, v3
    v_add_u32 v10, 40960, v8
    ''')
    for tl in range(20):
        a(f'ds_write_b128 v5, {vr(ACC + 4 * tl, 4)} offset:{tl * 1024}')
    a('s_waitcnt lgkmcnt(0)')
    a('s_barrier')
    R = FB
    for w in range(4):
        for j in range(5):
            a(f'ds_read_b128 {vr(R + 20 * w + 4 * j, 4)}, v{8 if w < 2 else 10} offset:{(w & 1) * 20480 + j * 1024}')
    a(f'''
    s_lshl_b32 s27, s22, 6
    s_lshl_b32 s28, s3, 4
    s_add_u32 s27, s27, s28
    v_add_u32 v9, s27, v6
    v_mul_u32_u24 v9, 1280, v9
    v_lshl_add_u32 v9, v7, 3, v9
    s_lshl_b32 s27, s24, 5
    v_add_u32 v9, s27, v9
    s_waitcnt lgkmcnt(0)
    ''')
    X = 24; Y = 28; P = 32
    for j in range(5):
        r0 = R + 4 * j
        for h in range(2):
            a(f'v_pk_add_f32 {vr(r0 + 2 * h, 2)}, {vr(r0 + 2 * h, 2)}, {vr(r0 + 20 + 2 * h, 2)}')
            a(f'v_pk_add_f32 {vr(r0 + 40 + 2 * h, 2)}, {vr(r0 + 40 + 2 * h, 2)}, {vr(r0 + 60 + 2 * h, 2)}')
        for h in range(2):
            a(f'v_pk_add_f32 {vr(X + 2 * h, 2)}, {vr(r0 + 2 * h, 2)}, {vr(r0 + 40 + 2 * h, 2)}')
        round4(a, X, P)
        unpack2(a, Y, EX + 2 * j); unpack2(a, Y + 2, EX + 2 * j + 1)
        for h in range(2):
            a(f'v_pk_add_f32 {vr(X + 2 * h, 2)}, {vr(X + 2 * h, 2)}, {vr(Y + 2 * h, 2)}')
        round4(a, X, P)
        unpack2(a, Y, EH + 2 * j); unpack2(a, Y + 2, EH + 2 * j + 1)
        for h in range(2):
            a(f'v_pk_add_f32 {vr(X + 2 * h, 2)}, {vr(X + 2 * h, 2)}, {vr(Y + 2 * h, 2)}')
        a(f'v_cvt_pk_bf16_f32 v{P + 2 + 2 * j}, v{X}, v{X + 1}')
        a(f'v_cvt_pk_bf16_f32 v{P + 3 + 2 * j}, v{X + 2}, v{X + 3}')
        a(f'buffer_store_dwordx2 {vr(P + 2 + 2 * j, 2)}, v9, s[44:47], 0 offen offset:{32 * j}')
    a.label(nm + '_exit')
    a('s_endpgm')
    return a


def gemm34():
    return [('k5_kernel', gen_g3(), 256, 448, G3_LDS), ('k6_kernel', gen_g4(), 256, 256, G4_LDS)]
```

```python
import sys, math
sys.path.insert(0, 'dbg')
from asmlib import *

L = 2048; D = 640; NS = 128; F = 1728
SZ_LD = L * D * 2
UT = 0x0
XT = UT + SZ_LD
HT = XT + SZ_LD
KR = HT + SZ_LD
KRS = 4224
W1P = 0xA80000
W2P = W1P + D * D * 2
W3P = W2P + D * D * 2
W4P = W3P + D * F * 2
GS = W4P + D * F * 2
HE = GS + SZ_LD
XPE = HE + SZ_LD
X1 = XPE + SZ_LD
H3 = X1 + SZ_LD
WS_END = H3 + L * F * 2
assert KR + D * KRS <= W1P
LOG2E = 1.4426950408889634

KA = dict(u=0, lar=8, aim=16, cr=24, ci=32, ldt=40, dsk=48, bx=56, w1=64, w2=72, w3=80, w4=88, out=96, dbg=104, ws=112)


def srd_from(a, sd, sp, off, size):
    if off:
        a(f's_add_u32 s{sd}, s{sp}, 0x{off:x}')
        a(f's_addc_u32 s{sd+1}, s{sp+1}, 0')
    else:
        a(f's_mov_b32 s{sd}, s{sp}')
        a(f's_mov_b32 s{sd+1}, s{sp+1}')
    a(f's_mov_b32 s{sd+2}, 0x{size:x}')
    a(f's_mov_b32 s{sd+3}, 0x00020000')


def bf16r(a, d, s):
    a(f'v_cvt_pk_bf16_f32 v{d}, v{s}, v{s}')
    a(f'v_lshlrev_b32 v{d}, 16, v{d}')


def row16_sum(a, v, t):
    for sh in (8, 4, 2, 1):
        a(f'v_add_f32_dpp v{v}, v{v}, v{v} row_ror:{sh} row_mask:0xf bank_mask:0xf')


NLN = 64
NPPT = 1480
NPP = NPPT // 4
NKG = D
K1_GRID = NLN + NPP + NKG
K1_LDS = 18432


def gen_k1():
    a = Asm()
    a.label('k1_kernel')
    a(f'''
    s_cmp_ge_u32 s2, {K1_GRID}
    s_cbranch_scc1 k1_exit
    s_load_dwordx2 s[4:5], s[0:1], {KA['ws']}
    v_mov_b32 v1, v0
    v_lshrrev_b32 v2, 6, v0
    v_and_b32 v0, 63, v0
    v_readfirstlane_b32 s3, v2
    s_cmp_lt_u32 s2, {NLN}
    s_cbranch_scc1 k1_ln
    s_cmp_lt_u32 s2, {NLN + NPP}
    s_cbranch_scc1 k1_pp
    s_branch k1_kg
    ''')
    a.label('k1_exit')
    a('s_endpgm')

    a.label('k1_ln')
    a(f's_load_dwordx2 s[6:7], s[0:1], {KA["u"]}')
    a('s_waitcnt lgkmcnt(0)')
    srd_from(a, 8, 6, 0, SZ_LD)
    srd_from(a, 12, 4, UT, 2 * SZ_LD)
    RAW = 8; FF0 = 48; UU = 48
    a(f'''
    v_and_b32 v2, 15, v0
    v_lshrrev_b32 v3, 4, v0
    s_lshl_b32 s16, s2, 5
    s_lshl_b32 s17, s3, 3
    s_add_u32 s18, s16, s17
    v_add_u32 v4, s18, v3
    s_movk_i32 s19, 1280
    v_mul_lo_u32 v4, v4, s19
    v_lshl_add_u32 v4, v2, 4, v4
    s_movk_i32 s20, 5120
    ''')
    for p in range(2):
        for c in range(5):
            so = 's20' if p else '0'
            a(f'buffer_load_dwordx4 {vr(RAW + 20 * p + 4 * c, 4)}, v4, s[8:11], {so} offen offset:{c * 256}')
    a(f'''
    v_add_u32 v5, s17, v3
    s_movk_i32 s19, 288
    v_mul_lo_u32 v5, v5, s19
    v_lshl_add_u32 v5, v2, 4, v5
    ''')
    a(f'''
    v_lshrrev_b32 v6, 2, v2
    v_lshl_add_u32 v6, v3, 3, v6
    v_mul_lo_u32 v6, v6, s19
    v_and_b32 v7, 3, v2
    v_lshl_add_u32 v6, v7, 3, v6
    s_lshr_b32 s21, s3, 1
    s_and_b32 s22, s3, 1
    s_mul_i32 s23, s21, 9216
    s_lshl_b32 s24, s22, 7
    s_add_u32 s23, s23, s24
    v_add_u32 v6, s23, v6
    ''')
    a(f'''
    s_mul_i32 s23, s21, {SZ_LD}
    s_lshl_b32 s24, s22, 18
    s_add_u32 s23, s23, s24
    s_lshl_b32 s24, s16, 1
    s_add_u32 s23, s23, s24
    v_lshlrev_b32 v7, 12, v2
    v_lshl_add_u32 v7, v3, 4, v7
    v_add_u32 v7, s23, v7
    ''')
    T0 = 108; M = 110; ACC = 112; S = 114; RS = 116
    for p in range(2):
        FF = FF0 + 20 * p
        a(f's_waitcnt vmcnt({5 if p == 0 else 0})')
        for k in range(20):
            a(f'v_lshlrev_b32 v{FF + 2 * k}, 16, v{RAW + 20 * p + k}')
            a(f'v_and_b32 v{FF + 2 * k + 1}, 0xffff0000, v{RAW + 20 * p + k}')
        a(f'v_pk_add_f32 {vr(ACC, 2)}, {vr(FF, 2)}, {vr(FF + 2, 2)}')
        for k in range(2, 20):
            a(f'v_pk_add_f32 {vr(ACC, 2)}, {vr(ACC, 2)}, {vr(FF + 2 * k, 2)}')
        a(f'v_add_f32 v{S}, v{ACC}, v{ACC + 1}')
        row16_sum(a, S, T0)
        a(f'v_mul_f32 v{M}, {fl(1.0 / 640)}, v{S}')
        for k in range(20):
            a(f'v_pk_add_f32 {vr(T0, 2)}, {vr(FF + 2 * k, 2)}, {vr(M, 2)} op_sel_hi:[1,0] neg_lo:[0,1] neg_hi:[0,1]')
            if k == 0:
                a(f'v_pk_mul_f32 {vr(ACC, 2)}, {vr(T0, 2)}, {vr(T0, 2)}')
            else:
                a(f'v_pk_fma_f32 {vr(ACC, 2)}, {vr(T0, 2)}, {vr(T0, 2)}, {vr(ACC, 2)}')
        a(f'v_add_f32 v{S}, v{ACC}, v{ACC + 1}')
        row16_sum(a, S, T0)
        a(f'v_mul_f32 v{S}, {fl(1.0 / 640)}, v{S}')
        bf16r(a, S, S)
        a(f'v_add_f32 v{S}, {fl(1e-5)}, v{S}')
        bf16r(a, S, S)
        a(f'v_sqrt_f32 v{S}, v{S}')
        bf16r(a, S, S)
        a(f'v_rcp_f32 v{RS}, v{S}')
        bf16r(a, M, M)
        for k in range(20):
            a(f'v_pk_add_f32 {vr(T0, 2)}, {vr(FF + 2 * k, 2)}, {vr(M, 2)} op_sel_hi:[1,0] neg_lo:[0,1] neg_hi:[0,1]')
            a(f'v_cvt_pk_bf16_f32 v{ACC}, v{T0}, v{T0 + 1}')
            a(f'v_lshlrev_b32 v{T0}, 16, v{ACC}')
            a(f'v_and_b32 v{T0 + 1}, 0xffff0000, v{ACC}')
            a(f'v_pk_mul_f32 {vr(T0, 2)}, {vr(T0, 2)}, {vr(RS, 2)} op_sel_hi:[1,0]')
            a(f'v_cvt_pk_bf16_f32 v{UU + 20 * p + k}, v{T0}, v{T0 + 1}')
    TT = 88
    for c in range(5):
        if c:
            a('s_barrier')
        for p in range(2):
            a(f'ds_write_b128 v5, {vr(UU + 20 * p + 4 * c, 4)} offset:{p * 1152}')
            a(f'ds_write_b128 v5, {vr(RAW + 20 * p + 4 * c, 4)} offset:{9216 + p * 1152}')
        a('s_waitcnt lgkmcnt(0)')
        a('s_barrier')
        for ct in range(4):
            a(f'ds_read_b64_tr_b16 {vr(TT + 4 * ct, 2)}, v6 offset:{ct * 32}')
            a(f'ds_read_b64_tr_b16 {vr(TT + 4 * ct + 2, 2)}, v6 offset:{ct * 32 + 1152}')
        for ct in range(4):
            a(f's_mov_b32 s20, 0x{c * 524288 + ct * 65536:x}')
            a(f's_waitcnt lgkmcnt({6 - 2 * ct})')
            a(f'buffer_store_dwordx4 {vr(TT + 4 * ct, 4)}, v7, s[12:15], s20 offen')
    a('s_endpgm')

    a.label('k1_pp')
    a(f'''
    s_load_dwordx4 s[8:11], s[0:1], {KA['w1']}
    s_load_dwordx4 s[12:15], s[0:1], {KA['w3']}
    s_sub_u32 s16, s2, {NLN}
    s_lshl_b32 s16, s16, 2
    s_add_u32 s16, s16, s3
    s_waitcnt lgkmcnt(0)
    ''')
    a(f'''
    s_cmp_lt_u32 s16, 400
    s_cbranch_scc0 k1_pp_34
    s_cmp_lt_u32 s16, 200
    s_cselect_b32 s20, s8, s10
    s_cselect_b32 s21, s9, s11
    s_cselect_b32 s22, 0, 200
    s_mov_b32 s24, 0x{W2P:x}
    s_cselect_b32 s24, 0x{W1P:x}, s24
    s_sub_u32 s22, s16, s22
    s_movk_i32 s23, 1280
    s_movk_i32 s25, 20
    s_movk_i32 s26, 6554
    s_movk_i32 s27, 10
    s_mov_b32 s28, {D * D * 2}
    s_branch k1_pp_go
    ''')
    a.label('k1_pp_34')
    a(f'''
    s_cmp_lt_u32 s16, 940
    s_cselect_b32 s20, s12, s14
    s_cselect_b32 s21, s13, s15
    s_movk_i32 s22, 940
    s_cselect_b32 s22, 400, s22
    s_mov_b32 s24, 0x{W4P:x}
    s_cselect_b32 s24, 0x{W3P:x}, s24
    s_movk_i32 s23, 1280
    s_cselect_b32 s23, 3456, s23
    s_cselect_b32 s25, 20, 54
    s_movk_i32 s26, 6554
    s_cselect_b32 s26, 2428, s26
    s_cselect_b32 s27, 27, 10
    s_sub_u32 s22, s16, s22
    s_mov_b32 s28, {D * F * 2}
    ''')
    a.label('k1_pp_go')
    a(f'''
    s_mul_i32 s29, s22, s26
    s_lshr_b32 s29, s29, 16
    s_mul_i32 s30, s29, s27
    s_sub_u32 s30, s22, s30
    s_mov_b32 s32, s20
    s_mov_b32 s33, s21
    s_mov_b32 s34, s28
    s_mov_b32 s35, 0x00020000
    s_add_u32 s36, s4, s24
    s_addc_u32 s37, s5, 0
    s_mov_b32 s38, s28
    s_mov_b32 s39, 0x00020000
    v_lshrrev_b32 v2, 3, v0
    v_mul_lo_u32 v2, v2, s23
    v_and_b32 v3, 7, v0
    v_lshl_add_u32 v2, v3, 4, v2
    s_lshl_b32 s40, s29, 5
    s_mul_i32 s40, s40, s23
    s_lshl_b32 s41, s30, 7
    s_add_u32 s40, s40, s41
    s_lshl_b32 s41, s23, 3
    s_lshl_b32 s42, s3, 12
    ''')
    for i in range(4):
        a(f's_add_u32 m0, s42, {i * 1024}')
        a(f'buffer_load_dwordx4 v2, s[32:35], s40 offen lds')
        if i < 3:
            a('s_add_u32 s40, s40, s41')
    a(f'''
    v_lshrrev_b32 v3, 4, v0
    v_bfe_u32 v4, v0, 2, 2
    v_lshl_add_u32 v4, v3, 3, v4
    v_lshlrev_b32 v4, 7, v4
    v_and_b32 v5, 3, v0
    v_lshl_add_u32 v4, v5, 3, v4
    v_add_u32 v4, s42, v4
    v_lshlrev_b32 v5, 4, v0
    s_lshl_b32 s43, s30, 2
    s_mul_i32 s43, s43, s25
    s_add_u32 s43, s43, s29
    s_lshl_b32 s43, s43, 10
    s_lshl_b32 s44, s25, 10
    s_waitcnt vmcnt(0)
    ''')
    for nt in range(4):
        a(f'ds_read_b64_tr_b16 {vr(8 + 4 * nt, 2)}, v4 offset:{nt * 32}')
        a(f'ds_read_b64_tr_b16 {vr(8 + 4 * nt + 2, 2)}, v4 offset:{nt * 32 + 512}')
    for nt in range(4):
        a(f's_waitcnt lgkmcnt({6 - 2 * nt})')
        a(f'buffer_store_dwordx4 {vr(8 + 4 * nt, 4)}, v5, s[36:39], s43 offen')
        if nt < 3:
            a('s_add_u32 s43, s43, s44')
    a('s_endpgm')

    a.label('k1_kg')
    a(f'''
    s_load_dwordx4 s[8:11], s[0:1], {KA['lar']}
    s_load_dwordx4 s[12:15], s[0:1], {KA['cr']}
    s_load_dwordx2 s[16:17], s[0:1], {KA['ldt']}
    s_sub_u32 s2, s2, {NLN + NPP}
    v_lshrrev_b32 v2, 4, v0
    v_lshlrev_b32 v2, 3, v2
    s_lshl_b32 s18, s2, 8
    s_lshl_b32 s19, s3, 6
    s_add_u32 s18, s18, s19
    v_add_u32 v2, s18, v2
    s_lshl_b32 s19, s2, 1
    v_mov_b32 v3, s19
    s_waitcnt lgkmcnt(0)
    ''')
    srd_from(a, 20, 8, 0, D * NS * 2)
    srd_from(a, 24, 10, 0, D * NS * 2)
    srd_from(a, 28, 12, 0, D * NS * 2)
    srd_from(a, 32, 14, 0, D * NS * 2)
    srd_from(a, 36, 16, 0, D * 2)
    srd_from(a, 40, 4, KR, D * KRS)
    a('buffer_load_ushort v24, v3, s[36:39], 0 offen')
    for i, sd in enumerate((20, 24, 28, 32)):
        for h in range(2):
            a(f'buffer_load_dwordx2 {vr(8 + 4 * i + 2 * h, 2)}, v2, s[{sd}:{sd + 3}], 0 offen offset:{32 * h}')
    AL = 32; BE = 40; CR = 48; CI = 56; YR = 64; YI = 72; BF = 80; ACC = 112; AF = 8; TM = 16
    VR = 4; DT = 5; FIN = 6
    a(f'''
    v_and_b32 v{VR}, 15, v0
    v_cvt_f32_u32 v{VR}, v{VR}
    s_waitcnt vmcnt(8)
    v_lshlrev_b32 v{DT}, 16, v24
    v_mul_f32 v{DT}, {fl(LOG2E)}, v{DT}
    v_exp_f32 v{DT}, v{DT}
    ''')
    bf16r(a, DT, DT)
    a('s_waitcnt vmcnt(0)')

    def unpack(dst, src):
        for p in range(8):
            s = src + (p >> 1)
            if p & 1:
                a(f'v_and_b32 v{dst + p}, 0xffff0000, v{s}')
            else:
                a(f'v_lshlrev_b32 v{dst + p}, 16, v{s}')
    unpack(AL, 8); unpack(BE, 12); unpack(CR, 16); unpack(CI, 20)
    for p in range(8):
        a(f'v_mul_f32 v{AL + p}, {fl(LOG2E)}, v{AL + p}')
    for p in range(8):
        a(f'v_exp_f32 v{AL + p}, v{AL + p}')
    for p in range(0, 8, 2):
        a(f'v_cvt_pk_bf16_f32 v{TM}, v{AL + p}, v{AL + p + 1}')
        a(f'v_lshlrev_b32 v{AL + p}, 16, v{TM}')
        a(f'v_and_b32 v{AL + p + 1}, 0xffff0000, v{TM}')
    for p in range(8):
        a(f'v_mul_f32 v{AL + p}, v{AL + p}, v{DT}')
        a(f'v_mul_f32 v{AL + p}, {fl(-LOG2E)}, v{AL + p}')
        a(f'v_mul_f32 v{BE + p}, v{BE + p}, v{DT}')
        a(f'v_mul_f32 v{BE + p}, {fl(1.0 / (2 * math.pi))}, v{BE + p}')
    a(f'v_max3_f32 v{TM}, |v{CR}|, |v{CI}|, 0')
    for p in range(1, 8):
        a(f'v_max3_f32 v{TM}, |v{CR + p}|, |v{CI + p}|, v{TM}')
    a(f'''
    v_readlane_b32 s44, v{TM}, 0
    v_readlane_b32 s45, v{TM}, 16
    v_readlane_b32 s46, v{TM}, 32
    v_readlane_b32 s47, v{TM}, 48
    s_max_u32 s44, s44, s45
    s_max_u32 s46, s46, s47
    s_max_u32 s44, s44, s46
    s_lshr_b32 s44, s44, 23
    s_max_u32 s44, s44, 13
    s_min_u32 s44, s44, 254
    s_sub_u32 s45, 267, s44
    s_lshl_b32 s45, s45, 23
    s_sub_u32 s46, s44, 12
    s_lshl_b32 s46, s46, 23
    v_mul_f32 v{FIN}, s46, v{DT}
    ''')
    for p in range(8):
        a(f'v_mul_f32 v{CR + p}, s45, v{CR + p}')
        a(f'v_mul_f32 v{CI + p}, s45, v{CI + p}')
    for p in range(8):
        a(f'v_mul_f32 v{AL + p}, v{AL + p}, v{VR}')
        a(f'v_mul_f32 v{BE + p}, v{BE + p}, v{VR}')
        a(f'v_fract_f32 v{BE + p}, v{BE + p}')
    for p in range(8):
        a(f'v_exp_f32 v{AL + p}, v{AL + p}')
        a(f'v_cos_f32 v{YR + p}, v{BE + p}')
        a(f'v_sin_f32 v{YI + p}, v{BE + p}')
    for p in range(0, 8, 2):
        a(f'v_pk_mul_f32 {vr(YR + p, 2)}, {vr(YR + p, 2)}, {vr(AL + p, 2)}')
        a(f'v_pk_mul_f32 {vr(YI + p, 2)}, {vr(YI + p, 2)}, {vr(AL + p, 2)}')

    def square():
        for p in range(0, 8, 2):
            a(f'v_pk_mul_f32 {vr(TM + p, 2)}, {vr(YI + p, 2)}, {vr(YI + p, 2)}')
            a(f'v_pk_mul_f32 {vr(YI + p, 2)}, {vr(YR + p, 2)}, {vr(YI + p, 2)}')
        for p in range(0, 8, 2):
            a(f'v_pk_fma_f32 {vr(YR + p, 2)}, {vr(YR + p, 2)}, {vr(YR + p, 2)}, {vr(TM + p, 2)} neg_lo:[0,0,1] neg_hi:[0,0,1]')
            a(f'v_pk_add_f32 {vr(YI + p, 2)}, {vr(YI + p, 2)}, {vr(YI + p, 2)}')

    def cvtB(dst):
        for p in range(8):
            a(f'v_cvt_pk_f16_f32 v{dst + p}, v{YR + p}, -v{YI + p}')
    AR = AL; AI = BE
    for k in range(4):
        cvtB(BF + 8 * k)
        square()
    for k in range(4):
        for p in range(0, 8, 2):
            a(f'v_pk_mul_f32 {vr(AR + p, 2)}, {vr(CI + p, 2)}, {vr(YI + p, 2)}')
            a(f'v_pk_mul_f32 {vr(AI + p, 2)}, {vr(CI + p, 2)}, {vr(YR + p, 2)}')
        for p in range(0, 8, 2):
            a(f'v_pk_fma_f32 {vr(AR + p, 2)}, {vr(CR + p, 2)}, {vr(YR + p, 2)}, {vr(AR + p, 2)} neg_lo:[0,0,1] neg_hi:[0,0,1]')
            a(f'v_pk_fma_f32 {vr(AI + p, 2)}, {vr(CR + p, 2)}, {vr(YI + p, 2)}, {vr(AI + p, 2)}')
        for p in range(8):
            a(f'v_cvt_pk_f16_f32 v{AF + p}, v{AR + p}, v{AI + p}')
        a(f'v_mfma_f32_16x16x32_f16 {vr(ACC + 4 * k, 4)}, {vr(AF, 4)}, {vr(BF + 8 * k, 4)}, 0')
        a(f'v_mfma_f32_16x16x32_f16 {vr(ACC + 4 * k, 4)}, {vr(AF + 4, 4)}, {vr(BF + 8 * k + 4, 4)}, {vr(ACC + 4 * k, 4)}')
        if k < 3:
            square()
    cvtB(BF)
    A4 = BF + 8
    a(f'v_mfma_f32_16x16x32_f16 {vr(A4, 4)}, {vr(AF, 4)}, {vr(BF, 4)}, 0')
    a(f'v_mfma_f32_16x16x32_f16 {vr(A4, 4)}, {vr(AF + 4, 4)}, {vr(BF + 4, 4)}, {vr(A4, 4)}')
    a(f'''
    s_mul_i32 s44, s3, 2624
    v_lshrrev_b32 v2, 4, v0
    v_lshlrev_b32 v2, 6, v2
    v_and_b32 v3, 15, v0
    v_add_u32 v2, v2, v3
    v_lshlrev_b32 v2, 2, v2
    v_add_u32 v2, s44, v2
    ''')
    for i in range(16):
        a(f'v_mul_f32 v{ACC + i}, v{ACC + i}, v{FIN}')
    a(f'v_mul_f32 v{A4}, v{A4}, v{FIN}')
    for ii in range(4):
        a(f'ds_write_b32 v2, v{ACC + ii} offset:{64 * ii}')
    a('s_mov_b32 exec_lo, 0')
    for k in range(1, 4):
        for ii in range(4):
            a(f'ds_write_b32 v2, v{ACC + 4 * k + ii} offset:{512 * k + 64 * ii}')
    a('s_mov_b32 exec_hi, 0x100')
    a(f'ds_write_b32 v2, v{A4} offset:{(640 - 136) * 4}')
    a('s_mov_b64 exec, -1')
    a(f'''
    v_lshlrev_b32 v2, 4, v1
    s_waitcnt lgkmcnt(0)
    s_barrier
    v_cmp_gt_u32 vcc, 161, v1
    s_and_saveexec_b64 s[44:45], vcc
    s_cbranch_execz k1_kg_skip
    ds_read_b128 v[8:11], v2
    ds_read_b128 v[12:15], v2 offset:2624
    ds_read_b128 v[16:19], v2 offset:5248
    ds_read_b128 v[20:23], v2 offset:7872
    s_waitcnt lgkmcnt(0)
    v_pk_add_f32 v[8:9], v[8:9], v[12:13]
    v_pk_add_f32 v[10:11], v[10:11], v[14:15]
    v_pk_add_f32 v[16:17], v[16:17], v[20:21]
    v_pk_add_f32 v[18:19], v[18:19], v[22:23]
    v_pk_add_f32 v[8:9], v[8:9], v[16:17]
    v_pk_add_f32 v[10:11], v[10:11], v[18:19]
    ds_write_b128 v2, v[8:11] offset:10496
    ''')
    a.label('k1_kg_skip')
    a('s_mov_b64 exec, -1')
    a(f'''
    v_lshlrev_b32 v3, 3, v1
    v_sub_u32 v3, 2047, v3
    v_cmp_gt_u32 vcc, 240, v1
    ''')
    for e in range(8):
        a(f'v_subrev_u32 v{8 + e}, {e}, v3')
        a(f'v_cvt_f32_u32 v{16 + e}, v{8 + e}')
    for e in range(0, 8, 2):
        a(f'v_cvt_pk_bf16_f32 v{24}, v{16 + e}, v{17 + e}')
        a(f'v_and_b32 v{16 + e}, 0xffff, v24')
        a(f'v_lshrrev_b32 v{17 + e}, 16, v24')
    for e in range(8):
        a(f'v_subrev_u32 v{16 + e}, 17024, v{16 + e}')
        a(f'v_cndmask_b32 v{8 + e}, v{8 + e}, v{16 + e}, vcc')
        a(f'v_lshlrev_b32 v{8 + e}, 2, v{8 + e}')
    a('s_waitcnt lgkmcnt(0)')
    a('s_barrier')
    for e in range(8):
        a(f'ds_read_b32 v{16 + e}, v{8 + e} offset:10496')
    a(f'''
    s_mul_i32 s44, s2, {KRS}
    v_add_u32 v2, s44, v2
    v_mov_b32 v28, 0
    v_mov_b32 v29, 0
    v_mov_b32 v30, 0
    v_mov_b32 v31, 0
    s_waitcnt lgkmcnt(0)
    ''')
    for e in range(0, 8, 2):
        a(f'v_cvt_pk_bf16_f32 v{24 + e // 2}, v{16 + e}, v{17 + e}')
    a('buffer_store_dwordx4 v[24:27], v2, s[40:43], 0 offen offset:16')
    a(f'''
    v_cmp_eq_u32 vcc, 0, v1
    s_and_saveexec_b64 s[44:45], vcc
    s_cbranch_execz k1_kg_end
    v_add_u32 v2, 4096, v2
    buffer_store_dwordx4 v[28:31], v2, s[40:43], 0 offen offset:16
    ''')
    a.label('k1_kg_end')
    a('s_endpgm')
    return a


KERNELS = []


def emit(out_path, kernels):
    hdr = open('sequential_preLN__ssm_conv_s4d__mixer_s_mlp__prompt.s.ref').read().split('\n')
    lines = [l for l in hdr if l.startswith(';') and '@launch' not in l]
    for (name, a, grid, block, lds) in kernels:
        lines.append(f'; @launch kernel={name} grid=({grid},1,1) block=({block},1,1) lds={lds}')
    lines.append('.amdgcn_target "amdgcn-amd-amdhsa--gfx950"')
    lines.append('.text')
    body = ''
    desc = '.section .rodata,"a"\n'
    seen = set()
    for (name, a, grid, block, lds) in kernels:
        if name in seen:
            continue
        seen.add(name)
        a.pad()
        body += f'.globl {name}\n.p2align 8\n.type {name},@function\n' + a.text()
        nv = (a.max_vgpr() + 7) // 8 * 8
        desc += f'''.p2align 6
.amdhsa_kernel {name}
  .amdhsa_next_free_vgpr {nv}
  .amdhsa_next_free_sgpr 102
  .amdhsa_accum_offset {nv}
  .amdhsa_group_segment_fixed_size 0
  .amdhsa_kernarg_size 120
  .amdhsa_user_sgpr_count 2
  .amdhsa_user_sgpr_kernarg_segment_ptr 1
  .amdhsa_system_sgpr_workgroup_id_x 1
.end_amdhsa_kernel
'''
        print(name, 'vgprs', nv, 'instrs', len(a.ins))
    open(out_path, 'w').write('\n'.join(lines) + '\n' + body + desc)


if __name__ == '__main__':
    ks = [('k1_kernel', gen_k1(), K1_GRID, 256, K1_LDS)]
    try:
        from gen2 import more_kernels
        ks += more_kernels()
    except ImportError:
        pass
    out = sys.argv[1] if len(sys.argv) > 1 else 'sequential_preLN__ssm_conv_s4d__mixer_s_mlp__prompt.s'
    emit(out, ks)
```

```python
import sys
sys.path.insert(0,'dbg')
from asmlib import *
from gen import *
from gen2 import more_kernels
for n in (4,):
    ks = [('k1_kernel', gen_k1(), K1_GRID, 256, K1_LDS)] + more_kernels()
    pre=[]
    for i in range(n):
        a=Asm(); a.label(f't{i}_kernel'); a('v_mov_b32 v1, 0'); a('s_endpgm')
        pre.append((f't{i}_kernel',a,256,256,0))
    emit(f'plus_after{n}.s',ks+pre)
    ks = [('k1_kernel', gen_k1(), K1_GRID, 256, K1_LDS)] + more_kernels()
    pre=[]
    for i in range(n):
        a=Asm(); a.label(f't{i}_kernel'); a('v_mov_b32 v1, 0'); a('s_endpgm')
        pre.append((f't{i}_kernel',a,256,256,0))
    emit(f'plus_before{n}.s',pre+ks)
```

```python
import re, os
STAMP = int(os.environ.get('STAMP', '0'))
STAMP_OFF = 0x4000000

TRANS = ('v_exp_f32', 'v_log_f32', 'v_rcp_f32', 'v_rsq_f32', 'v_sqrt_f32', 'v_sin_f32', 'v_cos_f32',
         'v_rcp_iflag_f32', 'v_exp_f16', 'v_log_f16', 'v_rcp_f16', 'v_rsq_f16', 'v_sqrt_f16')


def regs_of(op):
    op = op.strip()
    op = op.lstrip('-')
    if op.startswith('|'):
        op = op.strip('|')
    m = re.match(r'^(neg|abs)\((.*)\)$', op)
    if m:
        op = m.group(2)
    m = re.match(r'^([vsa])(\d+)$', op)
    if m:
        return {(m.group(1), int(m.group(2)))}
    m = re.match(r'^([vsa])\[(\d+):(\d+)\]$', op)
    if m:
        return {(m.group(1), i) for i in range(int(m.group(2)), int(m.group(3)) + 1)}
    if op == 'vcc':
        return {('s', 106), ('s', 107)}
    if op == 'vcc_lo':
        return {('s', 106)}
    if op == 'vcc_hi':
        return {('s', 107)}
    if op == 'exec':
        return {('s', 126), ('s', 127)}
    if op == 'exec_lo':
        return {('s', 126)}
    if op == 'exec_hi':
        return {('s', 127)}
    if op == 'm0':
        return {('s', 124)}
    return set()


class Ins:
    __slots__ = ('text', 'mn', 'ops', 'mods', 'kind', 'w', 'r', 'srcC', 'srcAB', 'passes', 'label', 'target',
                 'dpp', 'wide_store', 'ldsdma', 'states')

    def __init__(self, text):
        self.text = text
        self.label = None
        self.target = None
        self.w = set(); self.r = set(); self.srcC = set(); self.srcAB = set()
        self.passes = 0; self.dpp = False; self.wide_store = set(); self.ldsdma = False
        self.states = 1
        t = text.split(';')[0].strip()
        if t.endswith(':'):
            self.label = t[:-1]; self.kind = 'label'; self.mn = ''; self.states = 0
            return
        if t == '' or t.startswith('.'):
            self.kind = 'none'; self.mn = ''; self.states = 0
            return
        parts = t.split(None, 1)
        mn = parts[0]
        self.mn = mn
        rest = parts[1] if len(parts) > 1 else ''
        ops = []; depth = 0; cur = ''
        for ch in rest:
            if ch in '[(':
                depth += 1
            if ch in '])':
                depth -= 1
            if ch == ',' and depth == 0:
                ops.append(cur.strip()); cur = ''
            else:
                cur += ch
        if cur.strip():
            ops.append(cur.strip())
        mods = ''
        if ops:
            last = ops[-1].split(None, 1)
            if len(last) > 1:
                ops[-1] = last[0]; mods = last[1]
        self.ops = ops; self.mods = mods
        R = [regs_of(o) for o in ops]
        base = re.sub(r'_(e32|e64|dpp|sdwa)$', '', mn)
        if mn.startswith('v_mfma') or mn.startswith('v_smfmac'):
            self.kind = 'mfma'
            self.w = R[0]; self.srcAB = R[1] | R[2]; self.srcC = R[3]; self.r = self.srcAB | self.srcC
            self.passes = 8 if '32x32' in mn else 4
        elif mn.startswith('v_'):
            self.kind = 'valu'
            if base in TRANS:
                self.kind = 'trans'
            if base.startswith('v_dot'):
                self.kind = 'dot'
            if 'row_' in mods or 'quad_perm' in mods or 'wave_' in mods or mn.endswith('_dpp'):
                self.dpp = True
            if base.startswith('v_cmp'):
                if base.startswith('v_cmpx'):
                    raise Exception('avoid v_cmpx')
                self.w = R[0]; self.r = set().union(*R[1:])
            elif base.startswith('v_permlane') and 'swap' in base:
                self.w = R[0] | R[1]; self.r = R[0] | R[1]; self.kind = 'permlane'
            elif base in ('v_readfirstlane_b32', 'v_readlane_b32'):
                self.kind = 'readlane'
                self.w = R[0]; self.r = set().union(*R[1:])
            elif base in ('v_add_co_u32', 'v_sub_co_u32', 'v_subrev_co_u32', 'v_addc_co_u32', 'v_subb_co_u32',
                          'v_div_scale_f32'):
                self.w = R[0] | R[1]; self.r = set().union(*R[2:])
            elif base == 'v_nop':
                pass
            else:
                self.w = R[0]; self.r = set().union(*R[1:]) if len(R) > 1 else set()
                if base.startswith('v_fmac') or base.startswith('v_mac') or base.startswith('v_dot2c') or \
                        base.startswith('v_pk_fmac') or self.dpp or base == 'v_writelane_b32' or base.startswith('v_dot4c'):
                    self.r |= R[0]
                if base == 'v_cndmask_b32' and len(ops) == 3:
                    self.r |= regs_of('vcc')
        elif mn.startswith('ds_'):
            self.kind = 'ds'
            if mn.startswith('ds_read') or mn.startswith('ds_bpermute') or mn.startswith('ds_permute') or \
                    mn.startswith('ds_swizzle') or '_rtn' in mn:
                self.w = R[0]; self.r = set().union(*R[1:])
                if 'd16' in mn:
                    self.r |= R[0]
            else:
                self.r = set().union(*R)
        elif mn.startswith('buffer_') or mn.startswith('global_') or mn.startswith('flat_'):
            self.kind = 'vmem'
            islds = (' lds' in (' ' + mods)) or '_lds_' in mn
            if 'load' in mn and not islds:
                self.w = R[0]; self.r = set().union(*R[1:])
                if 'd16' in mn:
                    self.r |= R[0]
            else:
                self.r = set().union(*R)
                if islds:
                    self.ldsdma = True
                    self.r |= regs_of('m0')
                if 'store' in mn and ('x3' in mn or 'x4' in mn):
                    self.wide_store = R[0] if mn.startswith('buffer_') else R[1]
        elif mn.startswith('s_'):
            self.kind = 'salu'
            if mn == 's_nop':
                self.states = int(ops[0], 0) + 1
            elif mn.startswith('s_cbranch') or mn == 's_branch':
                self.kind = 'branch'; self.target = ops[0]
            elif mn.startswith('s_cmp') or mn.startswith('s_waitcnt') or mn in ('s_barrier', 's_endpgm', 's_setprio',
                                                                             's_sleep') or mn.startswith('s_bitcmp'):
                self.r = set().union(*R) if R else set()
            elif mn.startswith('s_load') or mn.startswith('s_buffer_load') or mn.startswith('s_mem'):
                self.kind = 'smem'
                self.w = R[0]; self.r = set().union(*R[1:])
            else:
                self.w = R[0]; self.r = set().union(*R[1:]) if len(R) > 1 else set()
                if 'saveexec' in mn:
                    self.w |= regs_of('exec'); self.r |= regs_of('exec')
        else:
            raise Exception('unknown instr ' + text)


VALUK = ('valu', 'trans', 'dot', 'permlane', 'readlane')


def need(p, c):
    n = 0
    pv = {x for x in p.w if x[0] in 'va'}
    ps = {x for x in p.w if x[0] == 's'}
    if p.kind in VALUK:
        if pv:
            if c.kind == 'mfma' and (pv & c.r):
                n = max(n, 2)
            if c.dpp and (pv & c.r):
                n = max(n, 2)
            if c.kind == 'permlane' and (pv & c.r):
                n = max(n, 2)
            if c.kind == 'readlane' and (pv & c.r):
                n = max(n, 1)
            if p.kind == 'trans' and c.kind in VALUK and c.kind != 'trans' and (pv & c.r):
                n = max(n, 1)
            if p.kind == 'trans' and c.kind == 'trans' and (pv & c.r):
                n = max(n, 1)
            if p.kind == 'dot':
                if c.kind == 'dot' and c.mn == p.mn:
                    ab = set().union(*[regs_of(o) for o in c.ops[1:3]])
                    if pv & ab:
                        n = max(n, 3)
                elif (pv & (c.r | c.w)):
                    n = max(n, 3)
        if ps:
            if c.kind in VALUK and (ps & c.r):
                n = max(n, 4 if c.kind == 'readlane' else 2)
            if c.kind == 'vmem' and (ps & c.r):
                n = max(n, 5)
            if c.kind == 'mfma' and (ps & regs_of('exec')):
                n = max(n, 4)
    if p.kind == 'mfma':
        big = p.passes == 8
        if c.kind == 'mfma':
            if p.w & c.srcAB:
                n = max(n, 12 if big else 8)
            if p.w & c.srcC:
                if not (p.w == c.srcC and p.passes == c.passes):
                    n = max(n, 10 if big else 6)
            elif p.w & c.w:
                n = max(n, 12 if big else 8)
        elif c.kind in VALUK or c.kind in ('vmem', 'ds'):
            if p.w & (c.r | c.w):
                n = max(n, 12 if big else 8)
            if c.kind in VALUK and (p.srcC & c.w):
                n = max(n, 7 if big else 3)
    if p.kind == 'salu' and (('s', 124) in p.w) and c.ldsdma:
        n = max(n, 1)
    if p.wide_store and (p.wide_store & c.w):
        n = max(n, 2 if c.kind in VALUK + ('mfma',) else 1)
    return n


class Asm:
    def __init__(self):
        self.ins = []

    def __call__(self, text):
        for line in text.split('\n'):
            line = line.strip()
            if line:
                self.ins.append(Ins(line))

    def label(self, name):
        self.ins.append(Ins(name + ':'))

    def stamp(self, i):
        if STAMP:
            if i == 0:
                self('s_mov_b32 s59, s2')
            self(f's_memrealtime s[{60 + 2 * i}:{61 + 2 * i}]')

    def stamp_end(self, kidx, n):
        if not STAMP:
            return
        self('s_waitcnt vmcnt(0)')
        self.stamp(n - 1)
        self(f'''
        s_mov_b64 exec, -1
        s_add_u32 s48, s4, 0x{STAMP_OFF:x}
        s_addc_u32 s49, s5, 0
        s_mov_b32 s50, 0x4000000
        s_mov_b32 s51, 0x00020000
        s_add_u32 s52, s59, {kidx * 2048}
        s_lshl_b32 s52, s52, 4
        s_add_u32 s52, s52, s3
        s_lshl_b32 s52, s52, 8
        v_mbcnt_lo_u32_b32 v2, -1, 0
        v_mbcnt_hi_u32_b32 v2, -1, v2
        v_lshlrev_b32 v2, 2, v2
        v_mov_b32 v1, 0
        s_waitcnt lgkmcnt(0)
        ''')
        for i in range(n):
            self(f'v_writelane_b32 v1, s{60 + 2 * i}, {i}')
        self('buffer_store_dword v1, v2, s[48:51], s52 offen')

    def pad(self):
        HIST = 16
        out = []
        labels = {}
        src = self.ins
        for i, x in enumerate(src):
            if x.label:
                labels[x.label] = i

        def required(hist, c):
            dist = 0
            req = 0
            for p in reversed(hist):
                if p.states == 0:
                    continue
                nn = need(p, c)
                if nn > dist:
                    req = max(req, nn - dist)
                dist += p.states
                if dist >= HIST:
                    break
            return req

        for i, x in enumerate(src):
            if x.kind in ('label', 'none'):
                out.append(x); continue
            req = required(out[-40:], x)
            if x.kind == 'branch':
                j = labels.get(x.target)
                assert j is not None, x.target
                for extra in range(0, 16):
                    h = out[-40:] + ([Ins('s_nop %d' % (extra - 1))] if extra else []) + [x]
                    ok = True
                    d = 0
                    k = j
                    hh = list(h)
                    while d < HIST and k < len(src):
                        y = src[k]; k += 1
                        if y.states == 0:
                            continue
                        dist = 0
                        for p in reversed(hh):
                            if p.states == 0:
                                continue
                            if any(p is q for q in h):
                                if need(p, y) > dist:
                                    ok = False
                            dist += p.states
                            if dist >= HIST:
                                break
                        if not ok:
                            break
                        hh.append(y); d += y.states
                        if y.mn in ('s_branch', 's_endpgm'):
                            break
                    if ok:
                        req = max(req, extra)
                        break
            while req > 0:
                k = min(req, 16)
                out.append(Ins('s_nop %d' % (k - 1)))
                req -= k
            out.append(x)
        self.ins = out

    def text(self):
        o = []
        for x in self.ins:
            if x.kind == 'label':
                o.append(x.text)
            else:
                o.append('    ' + x.text)
        return '\n'.join(o) + '\n'

    def max_vgpr(self):
        m = 0
        for x in self.ins:
            for (t, n) in (x.w | x.r):
                if t == 'v':
                    m = max(m, n)
        return m + 1


def _max_agpr(self):
    m = -1
    for x in self.ins:
        for (t, n) in (x.w | x.r):
            if t == 'a':
                m = max(m, n)
    return m + 1


Asm.max_agpr = _max_agpr


def ar(a, n=1):
    return 'a%d' % a if n == 1 else 'a[%d:%d]' % (a, a + n - 1)


def xr(a, n=1):
    return vr(a, n) if a < 256 else ar(a - 256, n)


def vr(a, n=1):
    return 'v%d' % a if n == 1 else 'v[%d:%d]' % (a, a + n - 1)


def sr(a, n=1):
    return 's%d' % a if n == 1 else 's[%d:%d]' % (a, a + n - 1)


import struct


def f2u(x):
    return struct.unpack('<I', struct.pack('<f', x))[0]


def fl(x):
    return '0x%08x' % f2u(x)
```

```python
from asmlib import *
from gen import *

KCS = 4384
UB = 8 * KCS
K2_LDS = UB + 80 * 80


def unpack2(a, d, s):
    a(f'v_lshlrev_b32 v{d}, 16, v{s}')
    a(f'v_and_b32 v{d + 1}, 0xffff0000, v{s}')


def gen_k2():
    a = Asm()
    a.label('k2_kernel')
    a(f'''
    s_cmp_ge_u32 s2, {D}
    s_cbranch_scc1 k2_exit
    ''')
    a.stamp(0)
    a(f'''
    s_load_dwordx2 s[4:5], s[0:1], {KA['ws']}
    s_load_dwordx2 s[6:7], s[0:1], {KA['dsk']}
    v_mov_b32 v1, v0
    v_lshrrev_b32 v2, 6, v0
    v_and_b32 v0, 63, v0
    v_readfirstlane_b32 s3, v2
    v_lshlrev_b32 v2, 4, v1
    s_and_b32 s20, s2, 7
    s_mul_i32 s20, s20, 80
    s_lshr_b32 s21, s2, 3
    s_add_u32 s19, s20, s21
    s_lshl_b32 s20, s19, 6
    s_mul_i32 s21, s19, {KRS}
    s_lshl_b32 s22, s19, 7
    s_add_u32 s22, s22, {HT - UX}
    s_lshl_b32 s23, s19, 1
    v_mov_b32 v3, s23
    v_lshrrev_b32 v28, 1, v1
    v_mul_u32_u24 v28, 40960, v28
    v_and_b32 v29, 1, v1
    v_lshl_add_u32 v28, v29, 4, v28
    v_lshrrev_b32 v29, 3, v1
    v_mul_u32_u24 v29, 0x14000, v29
    v_and_b32 v30, 7, v1
    v_lshl_add_u32 v29, v30, 4, v29
    s_waitcnt lgkmcnt(0)
    ''')
    srd_from(a, 8, 4, UX, 3 * SZ_LD)
    srd_from(a, 12, 4, KR, D * KRS)
    srd_from(a, 16, 6, 0, D * 2)
    KA_ = 48; KB_ = 56; SA_ = 64; SB_ = 72
    VU = 8; VX = 12; DSK = 16
    a(f'buffer_load_dwordx4 {vr(KA_, 4)}, v2, s[12:15], s21 offen offset:16')
    a(f'buffer_load_dwordx4 {vr(KA_ + 4, 4)}, v2, s[12:15], s21 offen offset:32')
    a(f'buffer_load_dwordx4 {vr(VU, 4)}, v28, s[8:11], s20 offen')
    a(f'buffer_load_dwordx4 {vr(VX, 4)}, v28, s[8:11], s20 offen offset:32')
    a(f'buffer_load_ushort v{DSK}, v3, s[16:19], 0 offen')
    a(f'''
    v_mov_b32 v20, 0
    v_mov_b32 v21, 0
    v_mov_b32 v22, 0
    v_mov_b32 v23, 0
    v_lshrrev_b32 v4, 2, v1
    v_and_b32 v5, 3, v1
    s_movk_i32 s24, {KCS}
    v_mul_lo_u32 v6, v4, s24
    v_lshl_add_u32 v6, v5, 4, v6
    v_cmp_gt_u32 vcc, 32, v1
    s_and_saveexec_b64 s[26:27], vcc
    ds_write_b128 v6, v[20:23] offset:{257 * 16}
    s_mov_b64 exec, -1
    v_cmp_gt_u32 vcc, 80, v1
    s_and_saveexec_b64 s[26:27], vcc
    ds_write_b128 v2, v[20:23] offset:{UB}
    s_mov_b64 exec, -1
    s_movk_i32 s24, 80
    v_mul_lo_u32 v6, v4, s24
    v_lshl_add_u32 v6, v5, 4, v6
    ''')
    VA = 24; VB = 25; VP = 26; VQ = 27
    a(f'''
    v_and_b32 v7, 7, v0
    s_movk_i32 s25, {KCS}
    v_mul_lo_u32 v{VA}, v7, s25
    v_lshrrev_b32 v7, 4, v0
    v_bfe_u32 v17, v0, 3, 1
    v_sub_u32 v17, v7, v17
    v_lshl_add_u32 v{VA}, v17, 4, v{VA}
    s_lshl_b32 s25, s3, 8
    s_sub_u32 s25, {256 * 16 - 103 * 32}, s25
    v_add_u32 v{VA}, s25, v{VA}
    v_and_b32 v17, 15, v0
    v_mul_lo_u32 v{VB}, v17, s24
    v_lshl_add_u32 v{VB}, v7, 4, v{VB}
    s_mul_i32 s25, s3, 320
    s_sub_u32 s25, {UB + 13 * 80}, s25
    v_add_u32 v{VB}, s25, v{VB}
    s_movk_i32 s25, 144
    v_mul_lo_u32 v{VP}, v17, s25
    v_lshl_add_u32 v{VP}, v7, 4, v{VP}
    s_mul_i32 s26, s3, 9216
    v_add_u32 v{VP}, s26, v{VP}
    v_mul_lo_u32 v{VQ}, v4, s25
    v_lshl_add_u32 v{VQ}, v5, 5, v{VQ}
    ''')
    a('s_waitcnt vmcnt(3)')
    for i in range(6):
        a(f'v_mov_b32 v{KB_ + i}, v{KA_ + i + 1}')
    for i in range(6):
        a(f'v_alignbit_b32 v{SA_ + i}, v{KA_ + i + 1}, v{KA_ + i}, 16')
        a(f'v_alignbit_b32 v{SB_ + i}, v{KA_ + i + 2}, v{KA_ + i + 1}, 16')
    src = {7: KA_, 5: KB_, 3: KA_ + 2, 1: KB_ + 2, 6: SA_, 4: SB_, 2: SA_ + 2, 0: SB_ + 2}
    for rho in (7, 3, 5, 1, 6, 4, 2, 0):
        a(f'ds_write_b128 v2, {vr(src[rho], 4)} offset:{rho * KCS + 16}')
    a('s_waitcnt vmcnt(2)')
    a(f'ds_write_b128 v6, {vr(VU, 4)} offset:{UB + 16 * 80}')
    a('s_waitcnt lgkmcnt(0)')
    a.stamp(1)
    a('s_barrier')
    a.stamp(2)
    FR = [32, 80]
    ACC = 128

    def reads(dd):
        fb = FR[dd & 1]
        for g in range(4):
            a(f'ds_read_b128 {vr(fb + 32 + 4 * g, 4)}, v{VB} offset:{(16 * g + 3 - dd) * 80}')
            for bh in range(2):
                a(f'ds_read_b128 {vr(fb + (2 * g + bh) * 4, 4)}, v{VA} offset:{(103 - (2 * dd + 32 * g + bh)) * 32}')
    reads(0)
    for dd in range(4):
        if dd < 3:
            reads(dd + 1)
            a('s_waitcnt lgkmcnt(12)')
        else:
            a('s_waitcnt lgkmcnt(0)')
        fb = FR[dd & 1]
        for g in range(4):
            for s in range(4 - g):
                for bh in range(2):
                    ac = ACC + (2 * (g + s) + bh) * 4
                    c = '0' if (dd == 0 and g == 0) else vr(ac, 4)
                    a(f'v_mfma_f32_16x16x32_bf16 {vr(ac, 4)}, {vr(fb + (2 * g + bh) * 4, 4)}, {vr(fb + 32 + 4 * s, 4)}, {c}')
    a.stamp(3)
    a('s_barrier')
    for be in range(4):
        for bh in range(2):
            a(f'ds_write_b128 v{VP}, {vr(ACC + (2 * be + bh) * 4, 4)} offset:{be * 2304 + bh * 64}')
    a('s_waitcnt lgkmcnt(0)')
    a('s_barrier')
    R = 32
    for w in range(4):
        a(f'ds_read_b128 {vr(R + 8 * w, 4)}, v{VQ} offset:{w * 9216}')
        a(f'ds_read_b128 {vr(R + 8 * w + 4, 4)}, v{VQ} offset:{w * 9216 + 16}')
    a(f'''
    s_waitcnt vmcnt(0)
    v_lshlrev_b32 v{DSK}, 16, v{DSK}
    s_waitcnt lgkmcnt(0)
    ''')
    for e in range(0, 8, 2):
        a(f'v_pk_add_f32 {vr(R + e, 2)}, {vr(R + e, 2)}, {vr(R + 8 + e, 2)}')
        a(f'v_pk_add_f32 {vr(R + 16 + e, 2)}, {vr(R + 16 + e, 2)}, {vr(R + 24 + e, 2)}')
    for e in range(0, 8, 2):
        a(f'v_pk_add_f32 {vr(R + e, 2)}, {vr(R + e, 2)}, {vr(R + 16 + e, 2)}')
    T = 64; T2 = 66; P = 68; O = 72
    for e in range(0, 8, 2):
        k = e // 2
        a(f'v_cvt_pk_bf16_f32 v{P}, v{R + e}, v{R + e + 1}')
        unpack2(a, R + e, P)
        unpack2(a, T, VU + k)
        a(f'v_pk_mul_f32 {vr(T, 2)}, {vr(T, 2)}, {vr(DSK, 2)} op_sel_hi:[1,0]')
        a(f'v_cvt_pk_bf16_f32 v{P}, v{T}, v{T + 1}')
        unpack2(a, T, P)
        a(f'v_pk_add_f32 {vr(T, 2)}, {vr(T, 2)}, {vr(R + e, 2)}')
        a(f'v_cvt_pk_bf16_f32 v{P}, v{T}, v{T + 1}')
        unpack2(a, T, P)
        unpack2(a, T2, VX + k)
        a(f'v_pk_add_f32 {vr(T, 2)}, {vr(T, 2)}, {vr(T2, 2)}')
        a(f'v_cvt_pk_bf16_f32 v{O + k}, v{T}, v{T + 1}')
    a(f'buffer_store_dwordx4 {vr(O, 4)}, v29, s[8:11], s22 offen')
    a.stamp(4)
    a.stamp_end(1, 6)
    a.label('k2_exit')
    a('s_endpgm')
    return a


def more_kernels():
    ks = [('k2_kernel', gen_k2(), D, 256, K2_LDS)]
    try:
        from gen5 import gemm_kernels
        ks += gemm_kernels()
    except ImportError:
        pass
    return ks
```

```python
from asmlib import *
from gen import *
from gen2 import unpack2

GK = -2.0 * 0.7978845608028654 * LOG2E


def gelu(a, x, t):
    a(f'v_mul_f32 v{t}, v{x}, v{x}')
    a(f'v_fmaak_f32 v{t}, v{t}, v{KG1}, {fl(GK)}') if False else None
    a(f'v_fma_f32 v{t}, v{t}, s90, s91') if False else None


def gelu4(a, X, T):
    for i in range(4):
        a(f'v_mul_f32 v{T + i}, s90, v{X + i}')
    for i in range(4):
        a(f'v_fmaak_f32 v{T + i}, v{T + i}, v{X + i}, {fl(GK)}')
    for i in range(4):
        a(f'v_mul_f32 v{T + i}, v{T + i}, v{X + i}')
    for i in range(4):
        a(f'v_exp_f32 v{T + i}, v{T + i}')
    for i in range(4):
        a(f'v_add_f32 v{T + i}, 1.0, v{T + i}')
    for i in range(4):
        a(f'v_rcp_f32 v{T + i}, v{T + i}')
    for i in range(4):
        a(f'v_mul_f32 v{X + i}, v{X + i}, v{T + i}')


def round4(a, X, P):
    a(f'v_cvt_pk_bf16_f32 v{P}, v{X}, v{X + 1}')
    a(f'v_cvt_pk_bf16_f32 v{P + 1}, v{X + 2}, v{X + 3}')
    unpack2(a, X, P)
    unpack2(a, X + 2, P + 1)


def xreduce(a, v, t):
    a(f'v_mov_b32 v{t}, v{v}')
    a(f'v_permlane32_swap_b32 v{v}, v{t}')
    a(f'v_add_f32 v{v}, v{v}, v{t}')
    a(f'v_mov_b32 v{t}, v{v}')
    a(f'v_permlane16_swap_b32 v{v}, v{t}')
    a(f'v_add_f32 v{v}, v{v}, v{t}')


def ln_scale(a, d, var, t):
    bf16r(a, d, var)
    a(f'v_add_f32 v{d}, {fl(1e-5)}, v{d}')
    bf16r(a, d, d)
    a(f'v_sqrt_f32 v{d}, v{d}')
    bf16r(a, d, d)


def wg_map(a):
    a('''
    s_and_b32 s20, s2, 7
    s_lshr_b32 s21, s2, 3
    s_lshr_b32 s22, s21, 3
    s_lshl_b32 s20, s20, 2
    s_add_u32 s22, s22, s20
    s_and_b32 s23, s21, 7
    ''')


ST = 81920
CSB = ST + 1024
G12_LDS = CSB + 512


def gen_g12(mode):
    nm = 'k3' if mode == 1 else 'k4'
    a = Asm()
    a.label(nm + '_kernel')
    a(f'''
    s_cmp_ge_u32 s2, 256
    s_cbranch_scc1 {nm}_exit
    ''')
    a.stamp(0)
    a(f'''
    s_load_dwordx2 s[4:5], s[0:1], {KA['ws']}
    v_lshrrev_b32 v2, 6, v0
    v_and_b32 v0, 63, v0
    v_readfirstlane_b32 s3, v2
    ''')
    wg_map(a)
    a(f'''
    s_mul_i32 s24, s23, 5
    s_add_u32 s24, s24, s3
    s_mul_i32 s25, s24, 20480
    v_lshlrev_b32 v3, 4, v0
    s_mov_b32 s90, {fl(GK * 0.044715)}
    s_waitcnt lgkmcnt(0)
    ''')
    if mode == 1:
        srd_from(a, 8, 4, HT, SZ_LD)
        srd_from(a, 12, 4, W1P, D * D * 2)
        srd_from(a, 16, 4, GS, 3 * SZ_LD)
    else:
        srd_from(a, 8, 4, GS, SZ_LD)
        srd_from(a, 12, 4, W2P, D * D * 2)
        srd_from(a, 16, 4, XPE, 2 * SZ_LD)
    VDE = 4; VDO = 5; VB = 8; ONES = 12; VS = 13; VQ = 14; VC = 15
    W = 32; BF = 112; ACC = 144
    if mode == 1:
        a(f'''
        v_lshrrev_b32 v6, 3, v0
        v_and_b32 v7, 7, v0
        v_bfe_u32 v16, v0, 4, 1
        v_lshlrev_b32 v16, 2, v16
        v_xor_b32 v7, v7, v16
        v_lshlrev_b32 v{VDE}, 12, v6
        v_lshl_add_u32 v{VDE}, v7, 4, v{VDE}
        v_xor_b32 v{VDO}, 32, v{VDE}
        s_lshl_b32 s26, s3, 17
        s_lshl_b32 s27, s22, 7
        s_add_u32 s26, s26, s27
        s_lshl_b32 s27, s3, 12
        ''')
    else:
        a(f'''
        s_mul_i32 s26, s22, 81920
        s_lshl_b32 s27, s3, 10
        s_add_u32 s26, s26, s27
        ''')
    for c in range(4):
        for i in range(4):
            if mode == 1:
                a(f's_add_u32 m0, s27, {c * 20480 + i * 1024}')
                a(f's_add_u32 s28, s26, {c * 655360 + i * 32768}')
                a(f'buffer_load_dwordx4 v{VDO if i & 1 else VDE}, s[8:11], s28 offen lds')
            else:
                a(f's_add_u32 m0, s27, {c * 5120 + i * 20480}')
                a(f's_add_u32 s28, s26, {c * 5120 + i * 20480}')
                a(f'buffer_load_dwordx4 v3, s[8:11], s28 offen lds')
        for s in range(5 * c, 5 * c + 5):
            a(f's_add_u32 s28, s25, {s * 1024}')
            a(f'buffer_load_dwordx4 {vr(W + 4 * s, 4)}, v3, s[12:15], s28 offen')
    for i in range(4):
        a(f's_add_u32 s{30 + i}, s3, {i}')
        a(f's_and_b32 s{30 + i}, s{30 + i}, 3')
    a('v_and_b32 v6, 15, v0')
    a('v_lshrrev_b32 v7, 4, v0')
    if mode == 1:
        a(f'''
        v_lshrrev_b32 v16, 2, v6
        v_lshl_add_u32 v16, v7, 3, v16
        v_lshlrev_b32 v16, 7, v16
        v_and_b32 v17, 3, v6
        v_lshl_add_u32 v16, v17, 3, v16
        v_lshrrev_b32 v17, 3, v6
        v_lshlrev_b32 v17, 1, v17
        v_and_b32 v18, 1, v7
        v_or_b32 v17, v17, v18
        v_mov_b32 v{ONES}, 0x3f803f80
        v_mov_b32 v{VS}, 0
        v_mov_b32 v{VQ}, 0
        v_mov_b32 v{VC}, 0
        ''')
        for i in range(4):
            a(f'v_xor_b32 v18, s{30 + i}, v17')
            a(f'v_lshl_add_u32 v{VB + i}, v18, 5, v16')
    else:
        for i in range(4):
            a(f's_mul_i32 s28, s{30 + i}, 20480')
            a(f'v_add_u32 v{VB + i}, s28, v3')
    a(f'''
    s_and_b32 s28, s24, 1
    s_lshl_b32 s28, s28, 9
    s_lshr_b32 s29, s24, 1
    s_lshl_b32 s29, s29, 10
    s_add_u32 s28, s28, s29
    v_lshrrev_b32 v19, 1, v7
    v_lshlrev_b32 v19, 8, v19
    v_and_b32 v18, 1, v7
    v_lshl_add_u32 v19, v18, 3, v19
    v_add_u32 v19, s28, v19
    v_lshl_add_u32 v20, v6, 4, v19
    s_lshl_b32 s29, s22, 2
    ''')
    for i in range(4):
        a(f's_add_u32 s{34 + i}, s29, s{30 + i}')
        a(f's_mul_i32 s{34 + i}, s{34 + i}, 20480')
    XP = 24
    if mode == 2:
        for i in range(4):
            a(f'buffer_load_dwordx2 {vr(XP + 2 * i, 2)}, v20, s[16:19], s{34 + i} offen')
    extra = 4 if mode == 2 else 0

    state = {'hi': False}

    def reads(s):
        fb = BF + 16 * (s & 1)
        if mode == 1:
            if s >= 16 and not state['hi']:
                state['hi'] = True
                for i in range(4):
                    a(f'v_add_u32 v{VB + i}, 0x10000, v{VB + i}')
            off = (s % 16) * 4096
            for i in range(4):
                a(f'ds_read_b64_tr_b16 {vr(fb + 4 * i, 2)}, v{VB + i} offset:{off}')
                a(f'ds_read_b64_tr_b16 {vr(fb + 4 * i + 2, 2)}, v{VB + i} offset:{off + 512}')
        else:
            for i in range(4):
                a(f'ds_read_b128 {vr(fb + 4 * i, 4)}, v{VB + i} offset:{s * 1024}')
    nrd = 8 if mode == 1 else 4
    for s in range(20):
        if s % 5 == 0:
            c = s // 5
            a(f's_waitcnt vmcnt({27 - 9 * c + extra})')
            a('s_barrier')
            a.stamp(1 + c)
            reads(s)
        if (s + 1) % 5:
            reads(s + 1)
            a(f's_waitcnt lgkmcnt({nrd})')
        else:
            a('s_waitcnt lgkmcnt(0)')
        fb = BF + 16 * (s & 1)
        for i in range(4):
            c_ = '0' if s == 0 else vr(ACC + 4 * i, 4)
            a(f'v_mfma_f32_16x16x32_bf16 {vr(ACC + 4 * i, 4)}, {vr(W + 4 * s, 4)}, {vr(fb + 4 * i, 4)}, {c_}')
            if mode == 1:
                a(f'v_dot2_f32_bf16 v{VS}, v{fb + i}, v{ONES}, v{VS}')
                a(f'v_dot2_f32_bf16 v{VQ}, v{fb + i}, v{fb + i}, v{VQ}')
                a(f'v_dot2_f32_bf16 v{VC}, v{W + 4 * s + i}, v{ONES}, v{VC}')
    T = 32
    a.stamp(5)
    if mode == 1:
        xreduce(a, VS, T); xreduce(a, VQ, T); xreduce(a, VC, T)
        a(f'''
        s_lshl_b32 s28, s3, 6
        s_add_u32 s28, s28, {CSB}
        v_lshl_add_u32 v{T}, v6, 2, s28
        ds_write_b32 v{T}, v{VC}
        v_lshl_add_u32 v{T}, v7, 4, s28
        ''')
        CS = 36
        a(f'ds_read_b128 {vr(CS, 4)}, v{T}')
        M1 = 40; R1 = 41; C1 = 42; C2 = 43; MEAN = 44; VAR = 45; S1 = 46; S2 = 47; M2 = 48
        a(f'''
        v_mul_f32 v{MEAN}, {fl(1.0 / 640)}, v{VS}
        v_mul_f32 v{VAR}, {fl(1.0 / 640)}, v{VQ}
        v_fma_f32 v{VAR}, -v{MEAN}, v{MEAN}, v{VAR}
        v_max_f32 v{VAR}, 0, v{VAR}
        ''')
        bf16r(a, M1, MEAN)
        ln_scale(a, S1, VAR, T)
        a(f'''
        v_rcp_f32 v{R1}, v{S1}
        v_sub_f32 v{M2}, v{MEAN}, v{M1}
        v_mul_f32 v{M2}, v{M2}, v{R1}
        v_mul_f32 v{VAR}, v{VAR}, v{R1}
        v_mul_f32 v{VAR}, v{VAR}, v{R1}
        ''')
        bf16r(a, M2, M2)
        ln_scale(a, S2, VAR, T)
        a(f'''
        v_fma_f32 v{C1}, v{M2}, v{S1}, v{M1}
        v_mul_f32 v{C2}, v{S1}, v{S2}
        v_rcp_f32 v{C2}, v{C2}
        s_lshl_b32 s28, s30, 8
        s_add_u32 s28, s28, {ST}
        v_lshl_add_u32 v{T}, v6, 4, s28
        ds_write_b128 v{T}, {vr(M1, 4)}
        s_waitcnt lgkmcnt(0)
        s_barrier
        ''')
        SS = 52
        HH = 68
        a(f'''
        v_lshrrev_b32 v16, 2, v6
        v_lshl_add_u32 v16, v7, 2, v16
        s_lshl_b32 s28, s24, 4
        v_add_u32 v16, s28, v16
        v_lshlrev_b32 v16, 7, v16
        v_and_b32 v17, 3, v6
        v_lshl_add_u32 v16, v17, 3, v16
        v_lshrrev_b32 v17, 3, v6
        v_lshlrev_b32 v17, 1, v17
        v_lshrrev_b32 v18, 1, v7
        v_or_b32 v17, v17, v18
        v_lshlrev_b32 v21, 4, v6
        ''')
        for i in range(4):
            a(f's_lshl_b32 s28, s{30 + i}, 8')
            a(f's_add_u32 s28, s28, {ST}')
            a(f'v_add_u32 v{T}, s28, v21')
            a(f'ds_read_b128 {vr(SS + 4 * i, 4)}, v{T}')
            a(f'v_xor_b32 v18, s{30 + i}, v17')
            a(f'v_lshl_add_u32 v{T + 1}, v18, 5, v16')
            a(f'ds_read_b64_tr_b16 {vr(HH + 2 * i, 2)}, v{T + 1}')
        a(f'''
        s_lshr_b32 s28, s23, 1
        s_lshr_b32 s29, s28, 1
        s_add_u32 s29, s29, 1
        s_sub_u32 s38, 0, s29
        s_bitcmp1_b32 s28, 0
        s_cselect_b32 s38, s38, s29
        s_lshl_b32 s39, s22, 6
        s_add_u32 s39, s39, s38
        s_mov_b32 s40, {HE - GS}
        s_mov_b32 s41, {XPE - GS}
        s_waitcnt lgkmcnt(0)
        ''')
        X = 76; TT = 80; P = 84; A0 = 86; A1 = 87
        for i in range(4):
            ac = ACC + 4 * i; ss = SS + 4 * i
            for ii in range(4):
                a(f'v_fma_f32 v{X + ii}, -v{ss + 2}, v{CS + ii}, v{ac + ii}')
            for ii in range(4):
                a(f'v_mul_f32 v{X + ii}, v{X + ii}, v{ss + 3}')
            round4(a, X, P)
            gelu4(a, X, TT)
            a(f'v_cvt_pk_bf16_f32 v{P}, v{X}, v{X + 1}')
            a(f'v_cvt_pk_bf16_f32 v{P + 1}, v{X + 2}, v{X + 3}')
            a(f'''
            s_lshl_b32 s28, s{30 + i}, 4
            s_add_u32 s28, s28, s39
            v_add_u32 v{A0}, s28, v6
            v_cmp_gt_u32 vcc, 2048, v{A0}
            v_and_b32 v{A0}, 2047, v{A0}
            v_lshrrev_b32 v{A1}, 4, v{A0}
            v_and_b32 v{A0}, 15, v{A0}
            v_mul_u32_u24 v{A1}, 20480, v{A1}
            v_lshl_add_u32 v{A0}, v{A0}, 4, v19
            v_add_u32 v{A0}, v{A0}, v{A1}
            v_cndmask_b32 v{P}, 0, v{P}, vcc
            v_cndmask_b32 v{P + 1}, 0, v{P + 1}, vcc
            buffer_store_dwordx2 {vr(P, 2)}, v{A0}, s[16:19], 0 offen
            s_add_u32 s28, s{34 + i}, s40
            buffer_store_dwordx2 {vr(HH + 2 * i, 2)}, v20, s[16:19], s28 offen
            ''')
            unpack2(a, X, HH + 2 * i)
            unpack2(a, X + 2, HH + 2 * i + 1)
            for ii in range(4):
                a(f'v_sub_f32 v{X + ii}, v{X + ii}, v{ss}')
            round4(a, X, P + 4)
            for ii in range(4):
                a(f'v_mul_f32 v{X + ii}, v{X + ii}, v{ss + 1}')
            a(f'v_cvt_pk_bf16_f32 v{P + 4}, v{X}, v{X + 1}')
            a(f'v_cvt_pk_bf16_f32 v{P + 5}, v{X + 2}, v{X + 3}')
            a(f's_add_u32 s28, s{34 + i}, s41')
            a(f'buffer_store_dwordx2 {vr(P + 4, 2)}, v20, s[16:19], s28 offen')
            P = 84 if P != 84 else 92
            A0 = P + 2; A1 = P + 3
    else:
        X = 76; Y = 80; P = 84
        a(f's_mov_b32 s40, {X1 - XPE}')
        a('s_waitcnt vmcnt(0)')
        for i in range(4):
            ac = ACC + 4 * i
            round4(a, ac, P)
            unpack2(a, Y, XP + 2 * i)
            unpack2(a, Y + 2, XP + 2 * i + 1)
            for ii in range(4):
                a(f'v_add_f32 v{X + ii}, v{ac + ii}, v{Y + ii}')
            a(f'v_cvt_pk_bf16_f32 v{P + 2 + 2 * i}, v{X}, v{X + 1}')
            a(f'v_cvt_pk_bf16_f32 v{P + 3 + 2 * i}, v{X + 2}, v{X + 3}')
            a(f's_add_u32 s28, s{34 + i}, s40')
            a(f'buffer_store_dwordx2 {vr(P + 2 + 2 * i, 2)}, v20, s[16:19], s28 offen')
    a.stamp(6)
    a.stamp_end(1 + mode, 8)
    a.label(nm + '_exit')
    a('s_endpgm')
    return a


def gemm_kernels():
    ks = [('k3_kernel', gen_g12(1), 256, 320, G12_LDS), ('k4_kernel', gen_g12(2), 256, 320, G12_LDS)]
    try:
        from gen4 import gemm34
        ks += gemm34()
    except ImportError:
        pass
    return ks
```

```python
from asmlib import *
from gen import *
from gen2 import unpack2
from gen3 import *

G3_ST = 81920
G3_CS = G3_ST + 512
G3_LDS = G3_CS + 7 * 128


def gen_g3():
    nm = 'k5'
    a = Asm()
    a.label(nm + '_kernel')
    a(f'''
    s_cmp_ge_u32 s2, 256
    s_cbranch_scc1 {nm}_exit
    ''')
    a.stamp(0)
    a(f'''
    s_load_dwordx2 s[4:5], s[0:1], {KA['ws']}
    v_lshrrev_b32 v2, 6, v0
    v_and_b32 v0, 63, v0
    v_readfirstlane_b32 s3, v2
    ''')
    wg_map(a)
    a(f'''
    s_mul_i32 s24, s23, 13
    s_min_u32 s25, s23, 4
    s_add_u32 s24, s24, s25
    s_lshl_b32 s25, s3, 1
    s_add_u32 s24, s24, s25
    s_mul_i32 s25, s24, 20480
    v_lshlrev_b32 v3, 4, v0
    s_mov_b32 s90, {fl(GK * 0.044715)}
    s_mul_i32 s26, s22, 81920
    s_waitcnt lgkmcnt(0)
    ''')
    srd_from(a, 8, 4, X1, SZ_LD)
    srd_from(a, 12, 4, W3P, D * F * 2)
    srd_from(a, 16, 4, H3, L * F * 2)
    for i in range(3):
        a(f'''
        s_mul_i32 s27, s3, 3
        s_add_u32 s27, s27, {i}
        s_min_u32 s27, s27, 19
        s_mul_i32 s28, s27, 13
        s_lshr_b32 s28, s28, 6
        s_mul_i32 s28, s28, 15
        s_add_u32 s27, s27, s28
        s_lshl_b32 s{40 + i}, s27, 10
        ''')
    VB = 8; ONES = 12; VS = 13; VQ = 14; VC = 15
    W = 32; BF = 192; ACC = 224
    for c in range(4):
        for i in range(3):
            a(f's_add_u32 m0, s{40 + i}, {c * 5120}')
            a(f's_add_u32 s28, m0, s26')
            a(f'buffer_load_dwordx4 v3, s[8:11], s28 offen lds')
        for s in range(5 * c, 5 * c + 5):
            for j in range(2):
                a(f's_add_u32 s28, s25, {s * 1024 + j * 20480}')
                a(f'buffer_load_dwordx4 {vr(W + 8 * s + 4 * j, 4)}, v3, s[12:15], s28 offen')
    for i in range(4):
        a(f's_add_u32 s{30 + i}, s3, {i}')
        a(f's_and_b32 s{30 + i}, s{30 + i}, 3')
    a(f'''
    v_and_b32 v6, 15, v0
    v_lshrrev_b32 v7, 4, v0
    v_mov_b32 v{ONES}, 0x3f803f80
    v_mov_b32 v{VS}, 0
    v_mov_b32 v{VQ}, 0
    v_mov_b32 v{VC}, 0
    v_mov_b32 v{VC + 1}, 0
    ''')
    for i in range(4):
        a(f's_mul_i32 s28, s{30 + i}, 20480')
        a(f'v_add_u32 v{VB + i}, s28, v3')

    def reads(s):
        fb = BF + 16 * (s & 1)
        for i in range(4):
            a(f'ds_read_b128 {vr(fb + 4 * i, 4)}, v{VB + i} offset:{s * 1024}')
    for s in range(20):
        if s % 5 == 0:
            c = s // 5
            a(f's_waitcnt vmcnt({39 - 13 * c})')
            a('s_barrier')
            a.stamp(1 + c)
            reads(s)
        if (s + 1) % 5:
            reads(s + 1)
            a(f's_waitcnt lgkmcnt(4)')
        else:
            a('s_waitcnt lgkmcnt(0)')
        fb = BF + 16 * (s & 1)
        for i in range(4):
            for j in range(2):
                ac = ACC + 16 * j + 4 * i
                c_ = '0' if s == 0 else vr(ac, 4)
                a(f'v_mfma_f32_16x16x32_bf16 {vr(ac, 4)}, {vr(W + 8 * s + 4 * j, 4)}, {vr(fb + 4 * i, 4)}, {c_}')
                if j == 0:
                    a(f'v_dot2_f32_bf16 v{VS}, v{fb + i}, v{ONES}, v{VS}')
                    a(f'v_dot2_f32_bf16 v{VC}, v{W + 8 * s + i}, v{ONES}, v{VC}')
                else:
                    a(f'v_dot2_f32_bf16 v{VQ}, v{fb + i}, v{fb + i}, v{VQ}')
                    a(f'v_dot2_f32_bf16 v{VC + 1}, v{W + 8 * s + 4 + i}, v{ONES}, v{VC + 1}')
    T = 32
    a.stamp(5)
    xreduce(a, VS, T); xreduce(a, VQ, T); xreduce(a, VC, T); xreduce(a, VC + 1, T)
    CS = 36
    a(f'''
    s_lshl_b32 s28, s3, 7
    s_add_u32 s28, s28, {G3_CS}
    v_lshl_add_u32 v{T}, v6, 2, s28
    ds_write_b32 v{T}, v{VC}
    ds_write_b32 v{T}, v{VC + 1} offset:64
    v_lshl_add_u32 v{T}, v7, 4, s28
    ds_read_b128 {vr(CS, 4)}, v{T}
    ds_read_b128 {vr(CS + 4, 4)}, v{T} offset:64
    ''')
    M = 44; R = 45; MEAN = 46; VAR = 47; S1 = 48
    a(f'''
    v_mul_f32 v{MEAN}, {fl(1.0 / 640)}, v{VS}
    v_mul_f32 v{VAR}, {fl(1.0 / 640)}, v{VQ}
    v_fma_f32 v{VAR}, -v{MEAN}, v{MEAN}, v{VAR}
    v_max_f32 v{VAR}, 0, v{VAR}
    ''')
    bf16r(a, M, MEAN)
    ln_scale(a, S1, VAR, T)
    a(f'''
    v_rcp_f32 v{R}, v{S1}
    s_lshl_b32 s28, s30, 7
    s_add_u32 s28, s28, {G3_ST}
    v_lshl_add_u32 v{T}, v6, 3, s28
    ds_write_b64 v{T}, {vr(M, 2)}
    s_waitcnt lgkmcnt(0)
    s_barrier
    v_lshlrev_b32 v21, 3, v6
    ''')
    SS = 52
    for i in range(4):
        a(f's_lshl_b32 s28, s{30 + i}, 7')
        a(f's_add_u32 s28, s28, {G3_ST}')
        a(f'v_add_u32 v{T}, s28, v21')
        a(f'ds_read_b64 {vr(SS + 2 * i, 2)}, v{T}')
    a(f'''
    v_lshrrev_b32 v19, 1, v7
    v_lshlrev_b32 v19, 8, v19
    v_and_b32 v18, 1, v7
    v_lshl_add_u32 v19, v18, 3, v19
    v_lshl_add_u32 v20, v6, 4, v19
    s_lshl_b32 s29, s22, 2
    ''')
    for i in range(4):
        a(f's_add_u32 s{34 + i}, s29, s{30 + i}')
        a(f's_mul_i32 s{34 + i}, s{34 + i}, {54 * 1024}')
    a('s_waitcnt lgkmcnt(0)')
    X = 64; TT = 68; P = 72
    for j in range(2):
        if j == 1:
            a(f'''
            s_cmp_lt_u32 s3, 6
            s_cbranch_scc1 {nm}_t2
            s_cmp_ge_u32 s23, 4
            s_cbranch_scc1 {nm}_fin
            ''')
            a.label(nm + '_t2')
            a('s_add_u32 s24, s24, 1')
        a(f'''
        s_and_b32 s28, s24, 1
        s_lshl_b32 s28, s28, 9
        s_lshr_b32 s29, s24, 1
        s_lshl_b32 s29, s29, 10
        s_add_u32 s38, s28, s29
        ''')
        for i in range(4):
            ac = ACC + 16 * j + 4 * i; ss = SS + 2 * i
            for ii in range(4):
                a(f'v_fma_f32 v{X + ii}, -v{ss}, v{CS + 4 * j + ii}, v{ac + ii}')
            for ii in range(4):
                a(f'v_mul_f32 v{X + ii}, v{X + ii}, v{ss + 1}')
            round4(a, X, TT)
            gelu4(a, X, TT)
            a(f'v_cvt_pk_bf16_f32 v{P}, v{X}, v{X + 1}')
            a(f'v_cvt_pk_bf16_f32 v{P + 1}, v{X + 2}, v{X + 3}')
            a(f's_add_u32 s28, s{34 + i}, s38')
            a(f'buffer_store_dwordx2 {vr(P, 2)}, v20, s[16:19], s28 offen')
            P += 2
    a.label(nm + '_fin')
    a.stamp(6)
    a.stamp_end(4, 8)
    a.label(nm + '_exit')
    a('s_endpgm')
    return a


G4_LDS = 81920
RING = 3


def gen_g4():
    nm = 'k6'
    a = Asm()
    a.label(nm + '_kernel')
    a(f'''
    s_cmp_ge_u32 s2, 256
    s_cbranch_scc1 {nm}_exit
    ''')
    a.stamp(0)
    a(f'''
    s_load_dwordx2 s[4:5], s[0:1], {KA['ws']}
    s_load_dwordx2 s[6:7], s[0:1], {KA['out']}
    v_lshrrev_b32 v2, 6, v0
    v_and_b32 v0, 63, v0
    v_readfirstlane_b32 s3, v2
    ''')
    wg_map(a)
    a(f'''
    s_mul_i32 s24, s23, 5
    s_mul_i32 s25, s3, 13
    s_min_u32 s26, s3, 2
    s_add_u32 s25, s25, s26
    s_lshl_b32 s25, s25, 10
    v_lshlrev_b32 v3, 4, v0
    v_add_u32 v4, s25, v3
    s_lshl_b32 s29, s22, 2
    s_waitcnt lgkmcnt(0)
    ''')
    srd_from(a, 8, 4, H3, L * F * 2)
    srd_from(a, 12, 4, W4P, D * F * 2)
    srd_from(a, 16, 4, HE, 3 * SZ_LD)
    srd_from(a, 44, 6, 0, SZ_LD)
    for j in range(5):
        a(f's_add_u32 s{30 + j}, s24, {j}')
        a(f's_mul_i32 s{30 + j}, s{30 + j}, {54 * 1024}')
    for i in range(4):
        a(f's_add_u32 s{36 + i}, s29, {i}')
        a(f's_mul_i32 s{36 + i}, s{36 + i}, {54 * 1024}')
    a(f'''
    s_cmp_lt_u32 s3, 2
    s_mov_b32 s40, 0x40000000
    s_cselect_b32 s40, 1024, s40
    v_and_b32 v6, 15, v0
    v_lshrrev_b32 v7, 4, v0
    v_lshrrev_b32 v19, 1, v7
    v_lshlrev_b32 v19, 8, v19
    v_and_b32 v18, 1, v7
    v_lshl_add_u32 v19, v18, 3, v19
    v_lshl_add_u32 v20, v6, 4, v19
    s_add_u32 s41, s29, s3
    s_mul_i32 s41, s41, 20480
    ''')
    EH = 216; EX = 226
    for j in range(5):
        a(f'''
        s_add_u32 s27, s24, {j}
        s_and_b32 s28, s27, 1
        s_lshl_b32 s28, s28, 9
        s_lshr_b32 s27, s27, 1
        s_lshl_b32 s27, s27, 10
        s_add_u32 s27, s27, s28
        s_add_u32 s27, s27, s41
        buffer_load_dwordx2 {vr(EH + 2 * j, 2)}, v20, s[16:19], s27 offen
        s_add_u32 s27, s27, {X1 - HE}
        buffer_load_dwordx2 {vr(EX + 2 * j, 2)}, v20, s[16:19], s27 offen
        ''')
    ACC = 24; FB = 104
    NIT = 14

    def loads(it):
        fb = FB + 36 * (it % RING)
        if it > 0:
            a(f'v_add_u32 v4, {"s40" if it == NIT - 1 else "1024"}, v4')
        for j in range(5):
            a(f'buffer_load_dwordx4 {vr(fb + 4 * j, 4)}, v4, s[12:15], s{30 + j} offen')
        for i in range(4):
            a(f'buffer_load_dwordx4 {vr(fb + 20 + 4 * i, 4)}, v4, s[8:11], s{36 + i} offen')
    for it in range(RING - 1):
        loads(it)
    for it in range(NIT):
        nxt = it + RING - 1
        if nxt < NIT:
            loads(nxt)
        pend = min(NIT - 1, it + RING - 1) - it
        a(f's_waitcnt vmcnt({9 * pend})')
        if it in (0, 4, 8, 12):
            a.stamp(1 + it // 4)
        fb = FB + 36 * (it % RING)
        for i in range(4):
            for j in range(5):
                ac = ACC + 4 * (5 * i + j)
                c_ = '0' if it == 0 else vr(ac, 4)
                a(f'v_mfma_f32_16x16x32_bf16 {vr(ac, 4)}, {vr(fb + 4 * j, 4)}, {vr(fb + 20 + 4 * i, 4)}, {c_}')
    a.stamp(5)
    a(f'''
    s_mul_i32 s27, s3, 20480
    v_add_u32 v5, s27, v3
    s_mul_i32 s27, s3, 5120
    v_add_u32 v8, s27, v3
    v_add_u32 v10, 40960, v8
    ''')
    for tl in range(20):
        a(f'ds_write_b128 v5, {vr(ACC + 4 * tl, 4)} offset:{tl * 1024}')
    a('s_waitcnt lgkmcnt(0)')
    a('s_barrier')
    R = FB
    for w in range(4):
        for j in range(5):
            a(f'ds_read_b128 {vr(R + 20 * w + 4 * j, 4)}, v{8 if w < 2 else 10} offset:{(w & 1) * 20480 + j * 1024}')
    a(f'''
    s_lshl_b32 s27, s22, 6
    s_lshl_b32 s28, s3, 4
    s_add_u32 s27, s27, s28
    v_add_u32 v9, s27, v6
    v_mul_u32_u24 v9, 1280, v9
    v_lshl_add_u32 v9, v7, 3, v9
    s_lshl_b32 s27, s24, 5
    v_add_u32 v9, s27, v9
    s_waitcnt lgkmcnt(0)
    ''')
    X = 24; Y = 28; P = 32
    for j in range(5):
        r0 = R + 4 * j
        for h in range(2):
            a(f'v_pk_add_f32 {vr(r0 + 2 * h, 2)}, {vr(r0 + 2 * h, 2)}, {vr(r0 + 20 + 2 * h, 2)}')
            a(f'v_pk_add_f32 {vr(r0 + 40 + 2 * h, 2)}, {vr(r0 + 40 + 2 * h, 2)}, {vr(r0 + 60 + 2 * h, 2)}')
        for h in range(2):
            a(f'v_pk_add_f32 {vr(X + 2 * h, 2)}, {vr(r0 + 2 * h, 2)}, {vr(r0 + 40 + 2 * h, 2)}')
        round4(a, X, P)
        unpack2(a, Y, EX + 2 * j); unpack2(a, Y + 2, EX + 2 * j + 1)
        for h in range(2):
            a(f'v_pk_add_f32 {vr(X + 2 * h, 2)}, {vr(X + 2 * h, 2)}, {vr(Y + 2 * h, 2)}')
        round4(a, X, P)
        unpack2(a, Y, EH + 2 * j); unpack2(a, Y + 2, EH + 2 * j + 1)
        for h in range(2):
            a(f'v_pk_add_f32 {vr(X + 2 * h, 2)}, {vr(X + 2 * h, 2)}, {vr(Y + 2 * h, 2)}')
        a(f'v_cvt_pk_bf16_f32 v{P + 2 + 2 * j}, v{X}, v{X + 1}')
        a(f'v_cvt_pk_bf16_f32 v{P + 3 + 2 * j}, v{X + 2}, v{X + 3}')
        a(f'buffer_store_dwordx2 {vr(P + 2 + 2 * j, 2)}, v9, s[44:47], 0 offen offset:{32 * j}')
    a.stamp(6)
    a.stamp_end(5, 8)
    a.label(nm + '_exit')
    a('s_endpgm')
    return a


def gemm34():
    return [('k5_kernel', gen_g3(), 256, 448, G3_LDS), ('k6_kernel', gen_g4(), 256, 256, G4_LDS)]
```

```python
from asmlib import *
from gen import *
from gen2 import unpack2
from gen3 import GK, gelu4, round4, xreduce, ln_scale, wg_map

MF = 'v_mfma_f32_16x16x32_bf16'


def prologue(a, nm, extra=''):
    a.label(nm + '_kernel')
    a(f'''
    s_cmp_ge_u32 s2, 256
    s_cbranch_scc1 {nm}_exit
    ''')
    a.stamp(0)
    a(f'''
    s_load_dwordx2 s[4:5], s[0:1], {KA['ws']}
    {extra}
    v_lshrrev_b32 v2, 6, v0
    v_and_b32 v0, 63, v0
    v_readfirstlane_b32 s3, v2
    v_lshlrev_b32 v3, 4, v0
    v_and_b32 v6, 15, v0
    v_lshrrev_b32 v7, 4, v0
    s_mov_b32 s90, {fl(GK * 0.044715)}
    ''')
    wg_map(a)
    for i in range(4):
        a(f's_add_u32 s{30 + i}, s3, {i}')
        a(f's_and_b32 s{30 + i}, s{30 + i}, 3')


def fm_lane(a, d, t1, t2):
    a(f'''
    v_lshrrev_b32 v{t1}, 1, v7
    v_lshlrev_b32 v{t1}, 8, v{t1}
    v_and_b32 v{t2}, 1, v7
    v_lshl_add_u32 v{t1}, v{t2}, 3, v{t1}
    v_lshl_add_u32 v{d}, v6, 4, v{t1}
    ''')


def tile_off(a, sd, sT, st):
    a(f'''
    s_and_b32 s{st}, s{sT}, 1
    s_lshl_b32 s{st}, s{st}, 9
    s_lshr_b32 s{sd}, s{sT}, 1
    s_lshl_b32 s{sd}, s{sd}, 10
    s_add_u32 s{sd}, s{sd}, s{st}
    ''')


def reduce_write(a, ACC, RB, va):
    for i in range(1, 4):
        a(f's_mul_i32 s28, s{30 + i}, 15360')
        a(f's_add_u32 s28, s28, {RB + (i - 1) * 5120}')
        a(f'v_add_u32 v{va + i - 1}, s28, v3')
    for i in range(1, 4):
        for j in range(5):
            a(f'ds_write_b128 v{va + i - 1}, {vr(ACC + 20 * i + 4 * j, 4)} offset:{j * 1024}')


def reduce_read(a, ACC, RB, va):
    a(f's_mul_i32 s28, s3, 15360')
    a(f's_add_u32 s28, s28, {RB}')
    a(f'v_add_u32 v{va}, s28, v3')
    for j in range(5):
        for i in range(1, 4):
            a(f'ds_read_b128 {vr(ACC + 20 * i + 4 * j, 4)}, v{va} offset:{(i - 1) * 5120 + j * 1024}')


def reduce_add(a, ACC, j):
    r0 = ACC + 4 * j
    for h in range(2):
        a(f'v_pk_add_f32 {vr(r0 + 2 * h, 2)}, {vr(r0 + 2 * h, 2)}, {vr(r0 + 20 + 2 * h, 2)}')
        a(f'v_pk_add_f32 {vr(r0 + 40 + 2 * h, 2)}, {vr(r0 + 40 + 2 * h, 2)}, {vr(r0 + 60 + 2 * h, 2)}')
    for h in range(2):
        a(f'v_pk_add_f32 {vr(r0 + 2 * h, 2)}, {vr(r0 + 2 * h, 2)}, {vr(r0 + 40 + 2 * h, 2)}')


G1_RB = 81920
G1_SB = G1_RB + 61440
G1_LDS = G1_SB + 2048


def gen_g1():
    nm = 'k3'
    a = Asm()
    prologue(a, nm)
    VDE = 4; VDO = 5; VB = 8; ONES = 12
    ACC = 32; SUM = 112; GR = 128; BF = 144; CS = 160; W = 256
    a(f'''
    s_mul_i32 s24, s23, 5
    s_mul_i32 s25, s24, 20480
    s_mul_i32 s26, s3, 5120
    s_add_u32 s25, s25, s26
    v_lshrrev_b32 v16, 3, v0
    v_and_b32 v17, 7, v0
    v_bfe_u32 v18, v0, 4, 1
    v_lshlrev_b32 v18, 2, v18
    v_xor_b32 v17, v17, v18
    v_lshlrev_b32 v{VDE}, 7, v16
    v_lshl_add_u32 v{VDE}, v17, 4, v{VDE}
    v_xor_b32 v{VDO}, 32, v{VDE}
    s_mul_i32 s27, s3, 20480
    s_mul_i32 s26, s22, 81920
    s_add_u32 s26, s26, s27
    s_waitcnt lgkmcnt(0)
    ''')
    srd_from(a, 8, 4, HT, SZ_LD)
    srd_from(a, 12, 4, W1P, D * D * 2)
    srd_from(a, 16, 4, GS, 3 * SZ_LD)
    srd_from(a, 44, 4, CS1, 4096)
    for i in range(5):
        for r in range(4):
            a(f's_add_u32 m0, s27, {i * 4096 + r * 1024}')
            a(f's_add_u32 s28, s26, {i * 4096 + r * 1024}')
            a(f'buffer_load_dwordx4 v{VDO if r & 1 else VDE}, s[8:11], s28 offen lds')
        for j in range(5):
            a(f's_add_u32 s28, s25, {i * 1024 + j * 20480}')
            a(f'buffer_load_dwordx4 {xr(W + 20 * i + 4 * j, 4)}, v3, s[12:15], s28 offen')
    a('v_lshlrev_b32 v16, 4, v7')
    a('s_lshl_b32 s28, s24, 6')
    for j in range(5):
        a(f'buffer_load_dwordx4 {vr(CS + 4 * j, 4)}, v16, s[44:47], s28 offen offset:{64 * j}')
    a(f'''
    v_lshrrev_b32 v16, 2, v6
    v_lshl_add_u32 v16, v7, 3, v16
    v_lshlrev_b32 v16, 7, v16
    v_and_b32 v17, 3, v6
    v_lshl_add_u32 v16, v17, 3, v16
    v_add_u32 v16, s27, v16
    v_lshrrev_b32 v17, 3, v6
    v_lshlrev_b32 v17, 1, v17
    v_and_b32 v18, 1, v7
    v_or_b32 v17, v17, v18
    ''')
    for i in range(4):
        a(f'v_mov_b32 v{ONES + i}, 0x3f803f80')
        a(f'v_xor_b32 v18, s{30 + i}, v17')
        a(f'v_lshl_add_u32 v{VB + i}, v18, 5, v16')
    for i in range(5):
        a(f's_waitcnt vmcnt({9 * (4 - i) + 5})')
        a.stamp(1 + i)
        for r in range(4):
            a(f'ds_read_b64_tr_b16 {vr(BF + 4 * r, 2)}, v{VB + r} offset:{i * 4096}')
            a(f'ds_read_b64_tr_b16 {vr(BF + 4 * r + 2, 2)}, v{VB + r} offset:{i * 4096 + 512}')
        order = [1, 2, 3, 0] if i == 4 else [0, 1, 2, 3]
        for n, r in enumerate(order):
            if i == 4:
                if n == 0:
                    a('s_waitcnt lgkmcnt(4)')
                elif n < 3:
                    a(f's_waitcnt lgkmcnt({4 - 2 * n})')
            else:
                a(f's_waitcnt lgkmcnt({6 - 2 * r})')
            b = vr(BF + 4 * r, 4)
            for j in range(5):
                ac = vr(ACC + 20 * r + 4 * j, 4)
                a(f'{MF} {ac}, {xr(W + 20 * i + 4 * j, 4)}, {b}, {"0" if i == 0 else ac}')
            ac = vr(SUM + 4 * r, 4)
            a(f'{MF} {ac}, {vr(ONES, 4)}, {b}, {"0" if i == 0 else ac}')
            ac = vr(GR + 4 * r, 4)
            a(f'{MF} {ac}, {b}, {b}, {"0" if i == 0 else ac}')
    a.stamp(6)
    reduce_write(a, ACC, G1_RB, 16)
    a(f'''
    s_mov_b32 s34, 0x22222222
    s_mov_b32 s35, 0x22222222
    s_mov_b32 s36, 0x44444444
    s_mov_b32 s37, 0x44444444
    s_mov_b32 s38, 0x88888888
    s_mov_b32 s39, 0x88888888
    v_lshlrev_b32 v19, 3, v6
    ''')
    for r in range(4):
        g = GR + 4 * r
        a(f'v_cndmask_b32 v{g}, v{g}, v{g + 1}, s[34:35]')
        a(f'v_cndmask_b32 v{g + 2}, v{g + 2}, v{g + 3}, s[38:39]')
        a(f'v_mov_b32 v{SUM + 4 * r + 1}, v{g}')
        a(f's_or_b64 s[40:41], s[36:37], s[38:39]')
        a(f'v_cndmask_b32 v{SUM + 4 * r + 1}, v{g}, v{g + 2}, s[40:41]')
        a(f's_lshl_b32 s28, s{30 + r}, 9')
        a(f's_add_u32 s28, s28, {G1_SB + r * 128}')
        a(f'v_add_u32 v{20 + r}, s28, v19')
    a('s_mov_b32 exec_lo, 0x00F0000F')
    a('s_mov_b32 exec_hi, 0xF0000F00')
    for r in range(4):
        a(f'ds_write_b64 v{20 + r}, {vr(SUM + 4 * r, 2)}')
    a('s_mov_b64 exec, -1')
    a(f'''
    v_lshrrev_b32 v16, 2, v6
    v_lshl_add_u32 v16, v7, 2, v16
    s_lshl_b32 s28, s24, 4
    v_add_u32 v16, s28, v16
    v_lshlrev_b32 v16, 7, v16
    v_and_b32 v17, 3, v6
    v_lshl_add_u32 v16, v17, 3, v16
    v_lshrrev_b32 v17, 3, v6
    v_lshlrev_b32 v17, 1, v17
    v_lshrrev_b32 v18, 1, v7
    v_or_b32 v17, v17, v18
    v_xor_b32 v17, s3, v17
    v_lshl_add_u32 v16, v17, 5, v16
    s_lshl_b32 s28, s3, 9
    s_add_u32 s28, s28, {G1_SB}
    v_add_u32 v19, s28, v19
    s_waitcnt lgkmcnt(0)
    s_barrier
    ''')
    SS = BF; HH = BF + 8
    for r in range(4):
        a(f'ds_read_b64 {vr(SS + 2 * r, 2)}, v19 offset:{r * 128}')
    HH = 112
    for j in range(5):
        a(f'ds_read_b64_tr_b16 {vr(HH + 2 * j, 2)}, v16 offset:{j * 2048}')
    reduce_read(a, ACC, G1_RB, 17)
    fm_lane(a, 20, 19, 18)
    a(f'''
    s_lshr_b32 s28, s23, 1
    s_lshr_b32 s29, s28, 1
    s_add_u32 s29, s29, 1
    s_sub_u32 s38, 0, s29
    s_bitcmp1_b32 s28, 0
    s_cselect_b32 s38, s38, s29
    s_lshl_b32 s39, s22, 6
    s_add_u32 s39, s39, s38
    s_lshl_b32 s28, s3, 4
    s_add_u32 s39, s39, s28
    v_add_u32 v21, s39, v6
    v_cmp_gt_u32 vcc, 2048, v21
    v_and_b32 v21, 2047, v21
    v_lshrrev_b32 v22, 4, v21
    v_and_b32 v21, 15, v21
    v_mul_u32_u24 v22, 20480, v22
    v_lshl_add_u32 v21, v21, 4, v19
    v_add_u32 v21, v21, v22
    s_lshl_b32 s34, s22, 2
    s_add_u32 s34, s34, s3
    s_mul_i32 s34, s34, 20480
    s_waitcnt lgkmcnt(15)
    v_pk_add_f32 {vr(SS, 2)}, {vr(SS, 2)}, {vr(SS + 2, 2)}
    v_pk_add_f32 {vr(SS + 4, 2)}, {vr(SS + 4, 2)}, {vr(SS + 6, 2)}
    v_pk_add_f32 {vr(SS, 2)}, {vr(SS, 2)}, {vr(SS + 4, 2)}
    ''')
    M1 = 24; R1 = 25; C1 = 26; C2 = 27; MEAN = 28; VAR = 29; S1 = 30; S2 = 31; M2 = 23; T = 22
    a(f'''
    v_mul_f32 v{MEAN}, {fl(1.0 / 640)}, v{SS}
    v_mul_f32 v{VAR}, {fl(1.0 / 640)}, v{SS + 1}
    v_fma_f32 v{VAR}, -v{MEAN}, v{MEAN}, v{VAR}
    v_max_f32 v{VAR}, 0, v{VAR}
    ''')
    bf16r(a, M1, MEAN)
    ln_scale(a, S1, VAR, T)
    a(f'''
    v_rcp_f32 v{R1}, v{S1}
    v_sub_f32 v{M2}, v{MEAN}, v{M1}
    v_mul_f32 v{M2}, v{M2}, v{R1}
    v_mul_f32 v{VAR}, v{VAR}, v{R1}
    v_mul_f32 v{VAR}, v{VAR}, v{R1}
    ''')
    bf16r(a, M2, M2)
    ln_scale(a, S2, VAR, T)
    a(f'''
    v_fma_f32 v{C1}, v{M2}, v{S1}, v{M1}
    v_mul_f32 v{C2}, v{S1}, v{S2}
    v_rcp_f32 v{C2}, v{C2}
    ''')
    TT = 124; P = 128; Y = 140
    for j in range(5):
        a(f's_add_u32 s28, s24, {j}')
        tile_off(a, 29, 28, 35)
        a(f's_waitcnt lgkmcnt({12 - 3 * j})')
        reduce_add(a, ACC, j)
        X = ACC + 4 * j
        for ii in range(4):
            a(f'v_fma_f32 v{X + ii}, -v{C1}, v{CS + 4 * j + ii}, v{X + ii}')
        for ii in range(4):
            a(f'v_mul_f32 v{X + ii}, v{X + ii}, v{C2}')
        round4(a, X, TT)
        gelu4(a, X, TT)
        p = P + 2 * j
        a(f'v_cvt_pk_bf16_f32 v{p}, v{X}, v{X + 1}')
        a(f'v_cvt_pk_bf16_f32 v{p + 1}, v{X + 2}, v{X + 3}')
        a(f'v_cndmask_b32 v{p}, 0, v{p}, vcc')
        a(f'v_cndmask_b32 v{p + 1}, 0, v{p + 1}, vcc')
        a(f'buffer_store_dwordx2 {vr(p, 2)}, v21, s[16:19], s29 offen')
        a(f's_add_u32 s29, s29, s34')
        a(f's_add_u32 s28, s29, {HE - GS}')
        a(f'buffer_store_dwordx2 {vr(HH + 2 * j, 2)}, v20, s[16:19], s28 offen')
        unpack2(a, Y, HH + 2 * j)
        unpack2(a, Y + 2, HH + 2 * j + 1)
        for ii in range(4):
            a(f'v_sub_f32 v{Y + ii}, v{Y + ii}, v{M1}')
        round4(a, Y, TT)
        for ii in range(4):
            a(f'v_mul_f32 v{Y + ii}, v{Y + ii}, v{R1}')
        a(f'v_cvt_pk_bf16_f32 v{X}, v{Y}, v{Y + 1}')
        a(f'v_cvt_pk_bf16_f32 v{X + 1}, v{Y + 2}, v{Y + 3}')
        a(f's_add_u32 s28, s29, {XPE - GS}')
        a(f'buffer_store_dwordx2 {vr(X, 2)}, v20, s[16:19], s28 offen')
    a.stamp(7)
    a.stamp_end(2, 9)
    a.label(nm + '_exit')
    a('s_endpgm')
    return a


G2_LDS = 61440


def gen_g2():
    nm = 'k4'
    a = Asm()
    prologue(a, nm)
    ACC = 32; BF = 112; XP = 192; W = 256
    a(f'''
    s_mul_i32 s24, s23, 5
    s_mul_i32 s25, s24, 20480
    s_mul_i32 s26, s3, 5120
    s_add_u32 s25, s25, s26
    s_lshl_b32 s29, s22, 2
    ''')
    for i in range(4):
        a(f's_add_u32 s{34 + i}, s29, s{30 + i}')
        a(f's_mul_i32 s{34 + i}, s{34 + i}, 20480')
        a(f's_add_u32 s{34 + i}, s{34 + i}, s26')
    for j in range(5):
        a(f's_add_u32 s{38 + j}, s25, {j * 20480}')
    a('v_add_u32 v4, 4096, v3')
    a('s_waitcnt lgkmcnt(0)')
    srd_from(a, 8, 4, GS, SZ_LD)
    srd_from(a, 12, 4, W2P, D * D * 2)
    srd_from(a, 16, 4, XPE, 2 * SZ_LD)
    srd_from(a, 44, 4, ST3, 131072)
    for i in range(5):
        va, off = ('v3', i * 1024) if i < 4 else ('v4', 0)
        for r in range(4):
            a(f'buffer_load_dwordx4 {vr(BF + 16 * i + 4 * r, 4)}, {va}, s[8:11], s{34 + r} offen offset:{off}')
        for j in range(5):
            a(f'buffer_load_dwordx4 {xr(W + 20 * i + 4 * j, 4)}, {va}, s[12:15], s{38 + j} offen offset:{off}')
    fm_lane(a, 20, 19, 18)
    a('s_sub_u32 s43, s34, s26')
    for j in range(5):
        a(f's_add_u32 s28, s24, {j}')
        tile_off(a, 48 + j, 28, 29)
        a(f's_add_u32 s{48 + j}, s{48 + j}, s43')
        a(f'buffer_load_dwordx2 {vr(XP + 2 * j, 2)}, v20, s[16:19], s{48 + j} offen')
    for i in range(5):
        a(f's_waitcnt vmcnt({9 * (4 - i) + 5})')
        a.stamp(1 + i)
        for r in ([1, 2, 3, 0] if i == 4 else [0, 1, 2, 3]):
            b = vr(BF + 16 * i + 4 * r, 4)
            for j in range(5):
                ac = vr(ACC + 20 * r + 4 * j, 4)
                a(f'{MF} {ac}, {xr(W + 20 * i + 4 * j, 4)}, {b}, {"0" if i == 0 else ac}')
    a.stamp(6)
    reduce_write(a, ACC, 0, 16)
    a('s_waitcnt lgkmcnt(0)')
    a('s_barrier')
    reduce_read(a, ACC, 0, 16)
    a(f'''
    s_lshl_b32 s28, s22, 3
    s_add_u32 s28, s28, s23
    s_lshl_b32 s28, s28, 2
    s_add_u32 s28, s28, s3
    s_lshl_b32 s42, s28, 7
    v_lshlrev_b32 v21, 3, v6
    s_waitcnt vmcnt(0)
    ''')
    Y = 112; P = 116; SA = 24; SQ = 26
    for j in range(5):
        a(f's_waitcnt lgkmcnt({12 - 3 * j})')
        reduce_add(a, ACC, j)
        X = ACC + 4 * j
        round4(a, X, P)
        unpack2(a, Y, XP + 2 * j)
        unpack2(a, Y + 2, XP + 2 * j + 1)
        for h in range(2):
            a(f'v_pk_add_f32 {vr(X + 2 * h, 2)}, {vr(X + 2 * h, 2)}, {vr(Y + 2 * h, 2)}')
        p = P + 2 + 2 * j
        round4(a, X, p)
        a(f's_add_u32 s28, s{48 + j}, {X1 - XPE}')
        a(f'buffer_store_dwordx2 {vr(p, 2)}, v20, s[16:19], s28 offen')
        for h in range(2):
            x = vr(X + 2 * h, 2)
            if j == 0 and h == 0:
                a(f'v_mov_b32 v{SA}, v{X}'); a(f'v_mov_b32 v{SA + 1}, v{X + 1}')
                a(f'v_pk_mul_f32 {vr(SQ, 2)}, {x}, {x}')
            else:
                a(f'v_pk_add_f32 {vr(SA, 2)}, {vr(SA, 2)}, {x}')
                a(f'v_pk_fma_f32 {vr(SQ, 2)}, {x}, {x}, {vr(SQ, 2)}')
    a(f'v_add_f32 v{SA}, v{SA}, v{SA + 1}')
    a(f'v_add_f32 v{SA + 1}, v{SQ}, v{SQ + 1}')
    xreduce(a, SA, SQ); xreduce(a, SA + 1, SQ + 1)
    a('s_mov_b64 exec, 0xffff')
    a(f'buffer_store_dwordx2 {vr(SA, 2)}, v21, s[44:47], s42 offen')
    a('s_mov_b64 exec, -1')
    a.stamp(7)
    a.stamp_end(3, 9)
    a.label(nm + '_exit')
    a('s_endpgm')
    return a


G3_LDS = 81920


def gen_g3():
    nm = 'k5'
    a = Asm()
    prologue(a, nm)
    ACC = 32; BF = 96; CS = 128; STT = 144; W = 160
    a(f'''
    s_mul_i32 s24, s23, 13
    s_min_u32 s25, s23, 4
    s_add_u32 s24, s24, s25
    s_lshl_b32 s25, s3, 2
    s_min_u32 s25, s25, 11
    s_add_u32 s24, s24, s25
    s_mul_i32 s25, s24, 20480
    s_mul_i32 s26, s22, 81920
    s_lshl_b32 s27, s3, 10
    s_add_u32 s26, s26, s27
    v_add_u32 v4, 0x40000000, v3
    v_mov_b32 v5, v3
    s_cmp_lt_u32 s3, 2
    s_cbranch_scc0 {nm}_w23
    v_mov_b32 v4, v3
    s_branch {nm}_wj
    ''')
    a.label(nm + '_w23')
    a(f'''
    s_cmp_eq_u32 s3, 2
    s_cbranch_scc1 {nm}_wj
    s_cmp_lt_u32 s23, 4
    s_cbranch_scc1 {nm}_wj
    v_mov_b32 v5, v4
    ''')
    a.label(nm + '_wj')
    a('s_waitcnt lgkmcnt(0)')
    srd_from(a, 8, 4, X1, SZ_LD)
    srd_from(a, 12, 4, W3P, D * F * 2)
    srd_from(a, 16, 4, H3, L * F * 2)
    srd_from(a, 44, 4, CS3, 8192)
    srd_from(a, 48, 4, ST3, 131072)

    def wload(tl, s):
        va = ['v3', 'v3', 'v5', 'v4'][tl]
        a(f's_add_u32 s28, s25, {tl * 20480 + (s >> 2) * 4096}')
        a(f'buffer_load_dwordx4 {xr(W + 80 * tl + 4 * s, 4)}, {va}, s[12:15], s28 offen offset:{(s & 3) * 1024}')
    a('s_mul_i32 s27, s3, 20480')
    a('s_mul_i32 s26, s22, 81920')
    a('s_add_u32 s26, s26, s27')
    for c in range(4):
        for i in range(5):
            a(f's_add_u32 m0, s27, {(5 * c + i) * 1024}')
            a(f's_add_u32 s28, s26, {(5 * c + i) * 1024}')
            a(f'buffer_load_dwordx4 v3, s[8:11], s28 offen lds')
        for s in range(5 * c, 5 * c + 5):
            wload(0, s); wload(1, s)
    fm_lane(a, 20, 19, 18)
    a(f'''
    v_lshlrev_b32 v16, 4, v7
    v_lshlrev_b32 v17, 10, v7
    v_lshl_add_u32 v17, v6, 3, v17
    s_lshl_b32 s34, s24, 6
    s_lshl_b32 s35, s22, 12
    v_add_u32 v8, 40960, v3
    ''')

    def reads(s):
        fb = BF + 16 * (s & 1)
        for r in range(4):
            a(f'ds_read_b128 {vr(fb + 4 * r, 4)}, v{3 if r < 2 else 8} offset:{(r & 1) * 20480 + s * 1024}')
    pend = [60]
    p2 = [(tl, s) for s in range(20) for tl in (2, 3)]
    issued = 0
    for s in range(20):
        if s % 5 == 0:
            c = s // 5
            a(f's_waitcnt vmcnt({(3 - c) * 15 + issued})')
            a('s_barrier')
            a.stamp(1 + c)
            reads(s)
            if c == 0:
                for tl in range(4):
                    a(f'buffer_load_dwordx4 {vr(CS + 4 * tl, 4)}, v16, s[44:47], s34 offen offset:{64 * tl}')
                for r in range(4):
                    for h in range(2):
                        a(f'buffer_load_dwordx2 {vr(STT + 4 * r + 2 * h, 2)}, v17, s[48:51], s35 offen offset:{h * 512 + r * 128}')
                issued += 12
            else:
                for _ in range(14 if c < 3 else 12):
                    wload(*p2.pop(0)); issued += 1
        if (s + 1) % 5:
            reads(s + 1)
            a(f's_waitcnt lgkmcnt(4)')
        else:
            a('s_waitcnt lgkmcnt(0)')
        fb = BF + 16 * (s & 1)
        for r in range(4):
            for tl in range(2):
                ac = vr(ACC + 16 * tl + 4 * r, 4)
                a(f'{MF} {ac}, {xr(W + 80 * tl + 4 * s, 4)}, {vr(fb + 4 * r, 4)}, {"0" if s == 0 else ac}')
    assert not p2
    a.stamp(5)
    a('s_waitcnt vmcnt(40)')
    T = 16
    for r in range(4):
        st = STT + 4 * r
        a(f'v_pk_add_f32 {vr(st, 2)}, {vr(st, 2)}, {vr(st + 2, 2)}')
        xreduce(a, st, st + 2); xreduce(a, st + 1, st + 3)
        a(f'''
        v_mul_f32 v{st}, {fl(1.0 / 640)}, v{st}
        v_mul_f32 v{st + 1}, {fl(1.0 / 640)}, v{st + 1}
        v_fma_f32 v{st + 1}, -v{st}, v{st}, v{st + 1}
        v_max_f32 v{st + 1}, 0, v{st + 1}
        ''')
        bf16r(a, st, st)
        ln_scale(a, st + 1, st + 1, T)
        a(f'v_rcp_f32 v{st + 1}, v{st + 1}')
    a('s_lshl_b32 s29, s22, 2')
    for r in range(4):
        a(f's_add_u32 s{36 + r}, s29, {r}')
        a(f's_mul_i32 s{36 + r}, s{36 + r}, {54 * 1024}')
    for tl in range(4):
        a(f's_add_u32 s28, s24, {tl}')
        tile_off(a, 40 + tl, 28, 29)
    a('v_sub_u32 v21, v5, v3')
    a('v_add_u32 v21, v21, v20')
    a('v_sub_u32 v22, v4, v3')
    a('v_add_u32 v22, v22, v20')

    def epi(tl, r, TT, P):
        e = Asm()
        X = ACC + 16 * tl + 4 * r; st = STT + 4 * r
        for ii in range(4):
            e(f'v_fma_f32 v{X + ii}, -v{st}, v{CS + 4 * tl + ii}, v{X + ii}')
        for ii in range(4):
            e(f'v_mul_f32 v{X + ii}, v{X + ii}, v{st + 1}')
        round4(e, X, TT)
        gelu4(e, X, TT)
        e(f'v_cvt_pk_bf16_f32 v{X}, v{X}, v{X + 1}')
        e(f'v_cvt_pk_bf16_f32 v{X + 1}, v{X + 2}, v{X + 3}')
        e(f's_add_u32 s28, s{36 + r}, s{40 + tl}')
        e(f'buffer_store_dwordx2 {vr(X, 2)}, v{[20, 20, 21, 22][tl]}, s[16:19], s28 offen')
        return [x.text for x in e.ins]
    el = []
    for tl in range(2):
        for r in range(4):
            el += epi(tl, r, 24, 0)
    nst = [0]
    reads(0)
    for s in range(20):
        a(f's_waitcnt vmcnt({2 * (19 - s) + nst[0]})')
        if s < 19:
            reads(s + 1)
            a(f's_waitcnt lgkmcnt(4)')
        else:
            a('s_waitcnt lgkmcnt(0)')
        fb = BF + 16 * (s & 1)
        for r in range(4):
            for tl in (2, 3):
                ac = vr(ACC + 16 * tl + 4 * r, 4)
                a(f'{MF} {ac}, {xr(W + 80 * tl + 4 * s, 4)}, {vr(fb + 4 * r, 4)}, {"0" if s == 0 else ac}')
                if s >= 1:
                    k = 0
                    while el and k < 3:
                        t = el.pop(0); a(t); k += 1
                        if t.startswith('buffer_store'):
                            nst[0] += 1
    for t in el:
        a(t)
    a.stamp(6)
    for tl in (2, 3):
        for r in range(4):
            for t in epi(tl, r, 24 + 4 * (r & 1), 0):
                a(t)
    a.stamp(7)
    a.stamp_end(4, 9)
    a.label(nm + '_exit')
    a('s_endpgm')
    return a


G4_LDS = 61440
RING = 6


def gen_g4():
    nm = 'k6'
    a = Asm()
    prologue(a, nm, f"s_load_dwordx2 s[6:7], s[0:1], {KA['out']}")
    a(f'''
    s_mul_i32 s24, s23, 5
    s_mul_i32 s25, s3, 13
    s_min_u32 s26, s3, 2
    s_add_u32 s25, s25, s26
    s_lshl_b32 s25, s25, 10
    v_add_u32 v4, s25, v3
    s_lshl_b32 s29, s22, 2
    ''')
    for j in range(5):
        a(f's_add_u32 s{34 + j}, s24, {j}')
        a(f's_mul_i32 s{34 + j}, s{34 + j}, {54 * 1024}')
    for i in range(4):
        a(f's_add_u32 s{39 + i}, s29, s{30 + i}')
        a(f's_mul_i32 s{39 + i}, s{39 + i}, {54 * 1024}')
    a(f'''
    s_cmp_lt_u32 s3, 2
    s_mov_b32 s43, 0x40000000
    s_cselect_b32 s43, 1024, s43
    s_waitcnt lgkmcnt(0)
    ''')
    srd_from(a, 8, 4, H3, L * F * 2)
    srd_from(a, 12, 4, W4P, D * F * 2)
    srd_from(a, 16, 4, HE, 3 * SZ_LD)
    srd_from(a, 44, 6, 0, SZ_LD)
    ACC = 32; EH = 112; EX = 122; FB = 136
    NIT = 14
    stage = [136, 172, 208, 256, 292, 328]

    def loads(it):
        fb = stage[it % RING]
        if it > 0:
            a(f'v_add_u32 v4, {"s43" if it == NIT - 1 else "1024"}, v4')
        for i in range(4):
            a(f'buffer_load_dwordx4 {xr(fb + 20 + 4 * i, 4)}, v4, s[8:11], s{39 + i} offen')
        for j in range(5):
            a(f'buffer_load_dwordx4 {xr(fb + 4 * j, 4)}, v4, s[12:15], s{34 + j} offen')
    for it in range(RING - 1):
        loads(it)
    fm_lane(a, 20, 19, 18)
    a('s_add_u32 s48, s29, s3')
    a('s_mul_i32 s48, s48, 20480')
    extra = 0
    for it in range(NIT):
        nxt = it + RING - 1
        if nxt < NIT:
            loads(nxt)
        if nxt == NIT:
            for j in range(5):
                a(f's_add_u32 s27, s24, {j}')
                tile_off(a, 28, 27, 26)
                a(f'''
                s_add_u32 s28, s28, s48
                buffer_load_dwordx2 {vr(EH + 2 * j, 2)}, v20, s[16:19], s28 offen
                s_add_u32 s28, s28, {X1 - HE}
                buffer_load_dwordx2 {vr(EX + 2 * j, 2)}, v20, s[16:19], s28 offen
                ''')
            extra = 10
        pend = min(NIT - 1, it + RING - 1) - it
        a(f's_waitcnt vmcnt({9 * pend + extra})')
        if it in (0, 4, 8, 12):
            a.stamp(1 + it // 4)
        fb = stage[it % RING]
        for i in ([1, 2, 3, 0] if it == NIT - 1 else [0, 1, 2, 3]):
            for j in range(5):
                ac = vr(ACC + 20 * i + 4 * j, 4)
                a(f'{MF} {ac}, {xr(fb + 4 * j, 4)}, {xr(fb + 20 + 4 * i, 4)}, {"0" if it == 0 else ac}')
    a.stamp(5)
    reduce_write(a, ACC, 0, 16)
    a('s_waitcnt lgkmcnt(0)')
    a('s_barrier')
    reduce_read(a, ACC, 0, 16)
    a(f'''
    s_lshl_b32 s27, s22, 6
    s_lshl_b32 s28, s3, 4
    s_add_u32 s27, s27, s28
    v_add_u32 v9, s27, v6
    v_mul_u32_u24 v9, 1280, v9
    v_lshl_add_u32 v9, v7, 3, v9
    s_lshl_b32 s27, s24, 5
    v_add_u32 v9, s27, v9
    s_waitcnt vmcnt(0)
    ''')
    Y = 24; P = 28
    for j in range(5):
        a(f's_waitcnt lgkmcnt({12 - 3 * j})')
        reduce_add(a, ACC, j)
        X = ACC + 4 * j
        round4(a, X, P)
        unpack2(a, Y, EX + 2 * j); unpack2(a, Y + 2, EX + 2 * j + 1)
        for h in range(2):
            a(f'v_pk_add_f32 {vr(X + 2 * h, 2)}, {vr(X + 2 * h, 2)}, {vr(Y + 2 * h, 2)}')
        round4(a, X, P)
        unpack2(a, Y, EH + 2 * j); unpack2(a, Y + 2, EH + 2 * j + 1)
        for h in range(2):
            a(f'v_pk_add_f32 {vr(X + 2 * h, 2)}, {vr(X + 2 * h, 2)}, {vr(Y + 2 * h, 2)}')
        a(f'v_cvt_pk_bf16_f32 v{X}, v{X}, v{X + 1}')
        a(f'v_cvt_pk_bf16_f32 v{X + 1}, v{X + 2}, v{X + 3}')
        a(f'buffer_store_dwordx2 {vr(X, 2)}, v9, s[44:47], 0 offen offset:{32 * j}')
    a.stamp(6)
    a.stamp_end(5, 8)
    a.label(nm + '_exit')
    a('s_endpgm')
    return a


def gemm_kernels():
    return [('k3_kernel', gen_g1(), 256, 256, G1_LDS), ('k4_kernel', gen_g2(), 256, 256, G2_LDS),
            ('k5_kernel', gen_g3(), 256, 256, G3_LDS), ('k6_kernel', gen_g4(), 256, 256, G4_LDS)]
```

```python
import sys, math
sys.path.insert(0, 'dbg')
from asmlib import *

L = 2048; D = 640; NS = 128; F = 1728
SZ_LD = L * D * 2
UX = 0x0
HT = UX + 2 * SZ_LD
KR = HT + SZ_LD
KRS = 4224
W1P = 0xA80000
W2P = W1P + D * D * 2
W3P = W2P + D * D * 2
W4P = W3P + D * F * 2
GS = W4P + D * F * 2
HE = GS + SZ_LD
XPE = HE + SZ_LD
X1 = XPE + SZ_LD
H3 = X1 + SZ_LD
CS1 = H3 + L * F * 2 + 65536
CS3 = CS1 + 4096
ST3 = CS3 + 8192
WS_END = ST3 + 131072
assert KR + D * KRS <= W1P
LOG2E = 1.4426950408889634

KA = dict(u=0, lar=8, aim=16, cr=24, ci=32, ldt=40, dsk=48, bx=56, w1=64, w2=72, w3=80, w4=88, out=96, dbg=104, ws=112)


def srd_from(a, sd, sp, off, size):
    if off:
        a(f's_add_u32 s{sd}, s{sp}, 0x{off:x}')
        a(f's_addc_u32 s{sd+1}, s{sp+1}, 0')
    else:
        a(f's_mov_b32 s{sd}, s{sp}')
        a(f's_mov_b32 s{sd+1}, s{sp+1}')
    a(f's_mov_b32 s{sd+2}, 0x{size:x}')
    a(f's_mov_b32 s{sd+3}, 0x00020000')


def bf16r(a, d, s):
    a(f'v_cvt_pk_bf16_f32 v{d}, v{s}, v{s}')
    a(f'v_lshlrev_b32 v{d}, 16, v{d}')


def row16_sum(a, v, t):
    for sh in (8, 4, 2, 1):
        a(f'v_add_f32_dpp v{v}, v{v}, v{v} row_ror:{sh} row_mask:0xf bank_mask:0xf')


NLN = 128
NPP = 74
NKG = D
K1_GRID = NLN + NPP + NKG
K1_LDS = 18944


def gen_k1():
    a = Asm()
    a.label('k1_kernel')
    a(f'''
    s_cmp_ge_u32 s2, {K1_GRID}
    s_cbranch_scc1 k1_exit
    ''')
    a.stamp(0)
    a(f'''
    s_load_dwordx2 s[4:5], s[0:1], {KA['ws']}
    v_mov_b32 v1, v0
    v_lshrrev_b32 v2, 6, v0
    v_and_b32 v0, 63, v0
    v_readfirstlane_b32 s3, v2
    s_cmp_lt_u32 s2, {NLN}
    s_cbranch_scc1 k1_ln
    s_cmp_lt_u32 s2, {NLN + NPP}
    s_cbranch_scc1 k1_pp
    s_branch k1_kg
    ''')
    a.label('k1_exit')
    a('s_endpgm')

    a.label('k1_ln')
    a(f's_load_dwordx2 s[6:7], s[0:1], {KA["u"]}')
    RAW = 8; FF = 48; UU = 28
    ASZ = 4736
    a(f'''
    v_and_b32 v2, 15, v0
    v_lshrrev_b32 v3, 4, v0
    s_lshl_b32 s16, s2, 4
    s_lshl_b32 s17, s3, 2
    s_add_u32 s18, s16, s17
    v_add_u32 v4, s18, v3
    v_mul_u32_u24 v4, 1280, v4
    v_lshl_add_u32 v4, v2, 4, v4
    s_waitcnt lgkmcnt(0)
    ''')
    srd_from(a, 8, 6, 0, SZ_LD)
    srd_from(a, 12, 4, UX, 2 * SZ_LD)
    for c in range(5):
        a(f'buffer_load_dwordx4 {vr(RAW + 4 * c, 4)}, v4, s[8:11], 0 offen offset:{c * 256}')
    a(f'''
    v_add_u32 v5, s17, v3
    v_mul_u32_u24 v5, 288, v5
    v_lshl_add_u32 v5, v2, 4, v5
    s_lshr_b32 s19, s3, 1
    s_lshl_b32 s19, s19, 7
    v_add_u32 v5, s19, v5
    ''')
    a(f'''
    v_lshrrev_b32 v6, 2, v2
    v_mul_u32_u24 v6, 288, v6
    v_and_b32 v7, 3, v2
    v_lshl_add_u32 v6, v7, 3, v6
    v_and_b32 v7, 1, v3
    v_mul_u32_u24 v7, {8 * 288 + 128}, v7
    v_add_u32 v6, v6, v7
    v_lshrrev_b32 v7, 1, v3
    v_mul_u32_u24 v7, {ASZ}, v7
    v_add_u32 v6, v6, v7
    s_lshl_b32 s19, s3, 6
    v_add_u32 v6, s19, v6
    ''')
    a(f'''
    s_mul_i32 s23, s2, 40960
    s_lshl_b32 s24, s3, 11
    s_add_u32 s23, s23, s24
    v_lshlrev_b32 v7, 6, v2
    v_lshl_add_u32 v7, v3, 4, v7
    ''')
    T0 = 88; M = 90; ACC = 92; S = 94; RS = 96
    a('s_waitcnt vmcnt(0)')
    a.stamp(1)
    for k in range(20):
        a(f'v_lshlrev_b32 v{FF + 2 * k}, 16, v{RAW + k}')
        a(f'v_and_b32 v{FF + 2 * k + 1}, 0xffff0000, v{RAW + k}')
    a(f'v_pk_add_f32 {vr(ACC, 2)}, {vr(FF, 2)}, {vr(FF + 2, 2)}')
    a(f'v_pk_add_f32 {vr(T0, 2)}, {vr(FF + 4, 2)}, {vr(FF + 6, 2)}')
    for k in range(4, 20, 2):
        a(f'v_pk_add_f32 {vr(ACC, 2)}, {vr(ACC, 2)}, {vr(FF + 2 * k, 2)}')
        a(f'v_pk_add_f32 {vr(T0, 2)}, {vr(T0, 2)}, {vr(FF + 2 * k + 2, 2)}')
    a(f'v_pk_add_f32 {vr(ACC, 2)}, {vr(ACC, 2)}, {vr(T0, 2)}')
    a(f'v_add_f32 v{S}, v{ACC}, v{ACC + 1}')
    row16_sum(a, S, T0)
    a(f'v_mul_f32 v{M}, {fl(1.0 / 640)}, v{S}')
    for k in range(20):
        tt = T0 if k & 1 else RS
        a(f'v_pk_add_f32 {vr(tt, 2)}, {vr(FF + 2 * k, 2)}, {vr(M, 2)} op_sel_hi:[1,0] neg_lo:[0,1] neg_hi:[0,1]')
        if k == 0:
            a(f'v_pk_mul_f32 {vr(ACC, 2)}, {vr(tt, 2)}, {vr(tt, 2)}')
        else:
            a(f'v_pk_fma_f32 {vr(ACC, 2)}, {vr(tt, 2)}, {vr(tt, 2)}, {vr(ACC, 2)}')
    a(f'v_add_f32 v{S}, v{ACC}, v{ACC + 1}')
    row16_sum(a, S, T0)
    a(f'v_mul_f32 v{S}, {fl(1.0 / 640)}, v{S}')
    bf16r(a, S, S)
    a(f'v_add_f32 v{S}, {fl(1e-5)}, v{S}')
    bf16r(a, S, S)
    a(f'v_sqrt_f32 v{S}, v{S}')
    bf16r(a, S, S)
    a(f'v_rcp_f32 v{RS}, v{S}')
    bf16r(a, M, M)
    TT = 100
    for c in range(5):
        for k in range(4 * c, 4 * c + 4):
            f = FF + 2 * k
            a(f'v_pk_add_f32 {vr(f, 2)}, {vr(f, 2)}, {vr(M, 2)} op_sel_hi:[1,0] neg_lo:[0,1] neg_hi:[0,1]')
        for k in range(4 * c, 4 * c + 4):
            f = FF + 2 * k
            a(f'v_cvt_pk_bf16_f32 v{f + 1}, v{f}, v{f + 1}')
        for k in range(4 * c, 4 * c + 4):
            f = FF + 2 * k
            a(f'v_lshlrev_b32 v{f}, 16, v{f + 1}')
            a(f'v_and_b32 v{f + 1}, 0xffff0000, v{f + 1}')
        for k in range(4 * c, 4 * c + 4):
            f = FF + 2 * k
            a(f'v_pk_mul_f32 {vr(f, 2)}, {vr(f, 2)}, {vr(RS, 2)} op_sel_hi:[1,0]')
        for k in range(4 * c, 4 * c + 4):
            f = FF + 2 * k
            a(f'v_cvt_pk_bf16_f32 v{UU + k}, v{f}, v{f + 1}')
        bo = (c & 1) * 2 * ASZ
        a(f'ds_write_b128 v5, {vr(UU + 4 * c, 4)} offset:{bo}')
        a(f'ds_write_b128 v5, {vr(RAW + 4 * c, 4)} offset:{bo + ASZ}')
        a('s_waitcnt lgkmcnt(0)')
        a('s_barrier')
        tb = TT + 8 * (c & 1)
        for ct in range(2):
            a(f'ds_read_b64_tr_b16 {vr(tb + 4 * ct, 2)}, v6 offset:{bo + ct * 32}')
            a(f'ds_read_b64_tr_b16 {vr(tb + 4 * ct + 2, 2)}, v6 offset:{bo + ct * 32 + 4 * 288}')
        for ct in range(2):
            a(f's_waitcnt lgkmcnt({2 - 2 * ct})')
            a(f'buffer_store_dwordx4 {vr(tb + 4 * ct, 4)}, v7, s[12:15], s23 offen offset:{ct * 1024}')
        if c < 4:
            a('s_add_u32 s23, s23, 8192')
    a.stamp(2)
    a.stamp_end(0, 4)
    a('s_endpgm')

    a.label('k1_pp')
    a(f'''
    s_load_dwordx4 s[8:11], s[0:1], {KA['w1']}
    s_load_dwordx4 s[12:15], s[0:1], {KA['w3']}
    s_sub_u32 s16, s2, {NLN}
    s_mul_i32 s17, s3, 5
    s_waitcnt lgkmcnt(0)
    ''')
    a(f'''
    s_cmp_lt_u32 s16, 20
    s_cbranch_scc0 k1_pp_34
    s_cmp_lt_u32 s16, 10
    s_cselect_b32 s20, s8, s10
    s_cselect_b32 s21, s9, s11
    s_cselect_b32 s26, 0, 10
    s_mov_b32 s24, 0x{W2P:x}
    s_cselect_b32 s24, 0x{W1P:x}, s24
    s_cselect_b32 s30, 0x{CS1:x}, 0
    s_sub_u32 s26, s16, s26
    s_mov_b32 s22, s17
    s_movk_i32 s23, 1280
    s_movk_i32 s25, 20
    s_mov_b32 s27, {32 * 1280}
    s_movk_i32 s29, 1024
    s_mov_b32 s28, {D * D * 2}
    s_branch k1_pp_go
    ''')
    a.label('k1_pp_34')
    a(f'''
    s_mov_b32 s28, {D * F * 2}
    s_cmp_lt_u32 s16, 47
    s_cbranch_scc0 k1_pp_4
    s_mov_b32 s20, s12
    s_mov_b32 s21, s13
    s_sub_u32 s26, s16, 20
    s_mov_b32 s24, 0x{W3P:x}
    s_mov_b32 s30, 0x{CS3:x}
    s_mov_b32 s22, s17
    s_movk_i32 s23, 3456
    s_movk_i32 s25, 20
    s_mov_b32 s27, {32 * 3456}
    s_movk_i32 s29, 1024
    s_branch k1_pp_go
    ''')
    a.label('k1_pp_4')
    a(f'''
    s_mov_b32 s20, s14
    s_mov_b32 s21, s15
    s_sub_u32 s22, s16, 47
    s_lshl_b32 s22, s22, 1
    s_lshr_b32 s26, s3, 1
    s_add_u32 s22, s22, s26
    s_and_b32 s26, s3, 1
    s_mul_i32 s26, s26, 5
    s_mov_b32 s24, 0x{W4P:x}
    s_mov_b32 s30, 0
    s_movk_i32 s23, 1280
    s_movk_i32 s25, 54
    s_movk_i32 s27, 128
    s_mov_b32 s29, {4 * 54 * 1024}
    ''')
    a.label('k1_pp_go')
    a(f'''
    s_mov_b32 s32, s20
    s_mov_b32 s33, s21
    s_mov_b32 s34, s28
    s_mov_b32 s35, 0x00020000
    s_add_u32 s36, s4, s24
    s_addc_u32 s37, s5, 0
    s_mov_b32 s38, s28
    s_mov_b32 s39, 0x00020000
    v_lshrrev_b32 v2, 3, v0
    v_mul_lo_u32 v2, v2, s23
    v_and_b32 v3, 7, v0
    v_lshl_add_u32 v2, v3, 4, v2
    s_lshl_b32 s40, s22, 5
    s_mul_i32 s40, s40, s23
    s_lshl_b32 s41, s26, 7
    s_add_u32 s40, s40, s41
    s_lshl_b32 s41, s23, 3
    ''')
    RW = 40
    for i in range(5):
        a('s_mov_b32 s42, s40')
        for r in range(4):
            a(f'buffer_load_dwordx4 {vr(RW + 16 * i + 4 * r, 4)}, v2, s[32:35], s42 offen')
            if r < 3:
                a('s_add_u32 s42, s42, s41')
        if i < 4:
            a('s_add_u32 s40, s40, s27')
    a(f'''
    s_lshl_b32 s42, s3, 12
    v_bfe_u32 v4, v0, 4, 1
    v_lshlrev_b32 v4, 2, v4
    v_xor_b32 v4, v4, v3
    v_lshlrev_b32 v4, 4, v4
    v_lshrrev_b32 v5, 3, v0
    v_lshl_add_u32 v4, v5, 7, v4
    v_add_u32 v4, s42, v4
    v_xor_b32 v5, 32, v4
    v_lshrrev_b32 v3, 4, v0
    v_bfe_u32 v6, v0, 2, 2
    v_lshl_add_u32 v6, v3, 3, v6
    v_lshlrev_b32 v6, 7, v6
    v_and_b32 v7, 3, v0
    v_lshl_add_u32 v6, v7, 3, v6
    v_add_u32 v6, s42, v6
    v_bfe_u32 v7, v0, 3, 1
    v_lshlrev_b32 v7, 1, v7
    v_and_b32 v3, 1, v3
    v_or_b32 v7, v7, v3
    v_lshlrev_b32 v12, 4, v0
    s_lshl_b32 s43, s26, 2
    s_mul_i32 s43, s43, s25
    s_add_u32 s43, s43, s22
    s_lshl_b32 s43, s43, 10
    s_lshl_b32 s44, s25, 10
    v_mov_b32 v16, 0x3f803f80
    v_mov_b32 v17, 0x3f803f80
    v_mov_b32 v18, 0x3f803f80
    v_mov_b32 v19, 0x3f803f80
    ''')
    for nt in range(4):
        a(f'v_xor_b32 v3, {nt}, v7')
        a(f'v_lshl_add_u32 v{8 + nt}, v3, 5, v6')
    CA = 20
    for i in range(5):
        a('s_waitcnt vmcnt(16)')
        if i == 0:
            a.stamp(1)
        for r in range(4):
            a(f'ds_write_b128 v{5 if r & 1 else 4}, {vr(RW + 16 * i + 4 * r, 4)} offset:{r * 1024}')
        a('s_waitcnt lgkmcnt(0)')
        fb = RW + 16 * i
        for nt in range(4):
            a(f'ds_read_b64_tr_b16 {vr(fb + 4 * nt, 2)}, v{8 + nt}')
            a(f'ds_read_b64_tr_b16 {vr(fb + 4 * nt + 2, 2)}, v{8 + nt} offset:512')
        a('s_mov_b32 s45, s43')
        for nt in range(4):
            a(f's_waitcnt lgkmcnt({6 - 2 * nt})')
            a(f'buffer_store_dwordx4 {vr(fb + 4 * nt, 4)}, v12, s[36:39], s45 offen')
            c_ = '0' if i == 0 else vr(CA + 4 * nt, 4)
            a(f'v_mfma_f32_16x16x32_bf16 {vr(CA + 4 * nt, 4)}, {vr(fb + 4 * nt, 4)}, v[16:19], {c_}')
            if nt < 3:
                a('s_add_u32 s45, s45, s44')
        if i < 4:
            a('s_add_u32 s43, s43, s29')
    a.stamp(2)
    a(f'''
    s_cmp_eq_u32 s30, 0
    s_cbranch_scc1 k1_pp_end
    s_lshl_b32 s42, s3, 8
    v_lshrrev_b32 v3, 4, v0
    v_lshl_add_u32 v3, v3, 4, s42
    s_mov_b32 exec_lo, 0x00010001
    s_mov_b32 exec_hi, 0x00010001
    ''')
    for nt in range(4):
        a(f'ds_write_b128 v3, {vr(CA + 4 * nt, 4)} offset:{16384 + nt * 64}')
    a(f'''
    s_mov_b64 exec, -1
    v_lshlrev_b32 v3, 2, v0
    s_add_u32 s36, s4, s30
    s_addc_u32 s37, s5, 0
    s_mov_b32 s38, 8192
    s_lshl_b32 s42, s26, 8
    s_waitcnt lgkmcnt(0)
    s_barrier
    s_cmp_lg_u32 s3, 0
    s_cbranch_scc1 k1_pp_end
    ds_read_b32 v4, v3 offset:16384
    ds_read_b32 v5, v3 offset:{16384 + 256}
    ds_read_b32 v6, v3 offset:{16384 + 512}
    ds_read_b32 v7, v3 offset:{16384 + 768}
    s_waitcnt lgkmcnt(0)
    v_add_f32 v4, v4, v5
    v_add_f32 v6, v6, v7
    v_add_f32 v4, v4, v6
    buffer_store_dword v4, v3, s[36:39], s42 offen
    ''')
    a.label('k1_pp_end')
    a.stamp_end(0, 4)
    a('s_endpgm')

    a.label('k1_kg')
    a(f'''
    s_load_dwordx4 s[8:11], s[0:1], {KA['lar']}
    s_load_dwordx4 s[12:15], s[0:1], {KA['cr']}
    s_load_dwordx2 s[16:17], s[0:1], {KA['ldt']}
    s_sub_u32 s2, s2, {NLN + NPP}
    v_lshrrev_b32 v2, 4, v0
    v_lshlrev_b32 v2, 3, v2
    s_lshl_b32 s18, s2, 8
    s_lshl_b32 s19, s3, 6
    s_add_u32 s18, s18, s19
    v_add_u32 v2, s18, v2
    s_lshl_b32 s19, s2, 1
    v_mov_b32 v3, s19
    s_waitcnt lgkmcnt(0)
    ''')
    srd_from(a, 20, 8, 0, D * NS * 2)
    srd_from(a, 24, 10, 0, D * NS * 2)
    srd_from(a, 28, 12, 0, D * NS * 2)
    srd_from(a, 32, 14, 0, D * NS * 2)
    srd_from(a, 36, 16, 0, D * 2)
    srd_from(a, 40, 4, KR, D * KRS)
    a('buffer_load_ushort v24, v3, s[36:39], 0 offen')
    for i, sd in enumerate((20, 24, 28, 32)):
        for h in range(2):
            a(f'buffer_load_dwordx2 {vr(8 + 4 * i + 2 * h, 2)}, v2, s[{sd}:{sd + 3}], 0 offen offset:{32 * h}')
    AL = 32; BE = 40; CR = 48; CI = 56; YR = 64; YI = 72; BF = 80; ACC = 112; AF = 8; TM = 16
    VR = 4; DT = 5; FIN = 6
    a(f'''
    v_and_b32 v{VR}, 15, v0
    v_cvt_f32_u32 v{VR}, v{VR}
    s_waitcnt vmcnt(8)
    v_lshlrev_b32 v{DT}, 16, v24
    v_mul_f32 v{DT}, {fl(LOG2E)}, v{DT}
    v_exp_f32 v{DT}, v{DT}
    ''')
    bf16r(a, DT, DT)
    a('s_waitcnt vmcnt(0)')
    a.stamp(1)

    def unpack(dst, src):
        for p in range(8):
            s = src + (p >> 1)
            if p & 1:
                a(f'v_and_b32 v{dst + p}, 0xffff0000, v{s}')
            else:
                a(f'v_lshlrev_b32 v{dst + p}, 16, v{s}')
    unpack(AL, 8); unpack(BE, 12); unpack(CR, 16); unpack(CI, 20)
    for p in range(8):
        a(f'v_mul_f32 v{AL + p}, {fl(LOG2E)}, v{AL + p}')
    for p in range(8):
        a(f'v_exp_f32 v{AL + p}, v{AL + p}')
    for p in range(0, 8, 2):
        a(f'v_cvt_pk_bf16_f32 v{TM}, v{AL + p}, v{AL + p + 1}')
        a(f'v_lshlrev_b32 v{AL + p}, 16, v{TM}')
        a(f'v_and_b32 v{AL + p + 1}, 0xffff0000, v{TM}')
    for p in range(8):
        a(f'v_mul_f32 v{AL + p}, v{AL + p}, v{DT}')
        a(f'v_mul_f32 v{AL + p}, {fl(-LOG2E)}, v{AL + p}')
        a(f'v_mul_f32 v{BE + p}, v{BE + p}, v{DT}')
        a(f'v_mul_f32 v{BE + p}, {fl(1.0 / (2 * math.pi))}, v{BE + p}')
    a(f'v_max3_f32 v{TM}, |v{CR}|, |v{CI}|, 0')
    for p in range(1, 8):
        a(f'v_max3_f32 v{TM}, |v{CR + p}|, |v{CI + p}|, v{TM}')
    a(f'''
    v_readlane_b32 s44, v{TM}, 0
    v_readlane_b32 s45, v{TM}, 16
    v_readlane_b32 s46, v{TM}, 32
    v_readlane_b32 s47, v{TM}, 48
    s_max_u32 s44, s44, s45
    s_max_u32 s46, s46, s47
    s_max_u32 s44, s44, s46
    s_lshr_b32 s44, s44, 23
    s_max_u32 s44, s44, 13
    s_min_u32 s44, s44, 254
    s_sub_u32 s45, 267, s44
    s_lshl_b32 s45, s45, 23
    s_sub_u32 s46, s44, 12
    s_lshl_b32 s46, s46, 23
    v_mul_f32 v{FIN}, s46, v{DT}
    ''')
    for p in range(8):
        a(f'v_mul_f32 v{CR + p}, s45, v{CR + p}')
        a(f'v_mul_f32 v{CI + p}, s45, v{CI + p}')
    for p in range(8):
        a(f'v_mul_f32 v{AL + p}, v{AL + p}, v{VR}')
        a(f'v_mul_f32 v{BE + p}, v{BE + p}, v{VR}')
        a(f'v_fract_f32 v{BE + p}, v{BE + p}')
    for p in range(8):
        a(f'v_exp_f32 v{AL + p}, v{AL + p}')
        a(f'v_cos_f32 v{YR + p}, v{BE + p}')
        a(f'v_sin_f32 v{YI + p}, v{BE + p}')
    for p in range(0, 8, 2):
        a(f'v_pk_mul_f32 {vr(YR + p, 2)}, {vr(YR + p, 2)}, {vr(AL + p, 2)}')
        a(f'v_pk_mul_f32 {vr(YI + p, 2)}, {vr(YI + p, 2)}, {vr(AL + p, 2)}')

    def square():
        for p in range(0, 8, 2):
            a(f'v_pk_mul_f32 {vr(TM + p, 2)}, {vr(YI + p, 2)}, {vr(YI + p, 2)}')
            a(f'v_pk_mul_f32 {vr(YI + p, 2)}, {vr(YR + p, 2)}, {vr(YI + p, 2)}')
        for p in range(0, 8, 2):
            a(f'v_pk_fma_f32 {vr(YR + p, 2)}, {vr(YR + p, 2)}, {vr(YR + p, 2)}, {vr(TM + p, 2)} neg_lo:[0,0,1] neg_hi:[0,0,1]')
            a(f'v_pk_add_f32 {vr(YI + p, 2)}, {vr(YI + p, 2)}, {vr(YI + p, 2)}')

    def cvtB(dst):
        for p in range(8):
            a(f'v_cvt_pk_f16_f32 v{dst + p}, v{YR + p}, -v{YI + p}')
    AR = AL; AI = BE
    for k in range(4):
        cvtB(BF + 8 * k)
        square()
    for k in range(4):
        for p in range(0, 8, 2):
            a(f'v_pk_mul_f32 {vr(AR + p, 2)}, {vr(CI + p, 2)}, {vr(YI + p, 2)}')
            a(f'v_pk_mul_f32 {vr(AI + p, 2)}, {vr(CI + p, 2)}, {vr(YR + p, 2)}')
        for p in range(0, 8, 2):
            a(f'v_pk_fma_f32 {vr(AR + p, 2)}, {vr(CR + p, 2)}, {vr(YR + p, 2)}, {vr(AR + p, 2)} neg_lo:[0,0,1] neg_hi:[0,0,1]')
            a(f'v_pk_fma_f32 {vr(AI + p, 2)}, {vr(CR + p, 2)}, {vr(YI + p, 2)}, {vr(AI + p, 2)}')
        for p in range(8):
            a(f'v_cvt_pk_f16_f32 v{AF + p}, v{AR + p}, v{AI + p}')
        a(f'v_mfma_f32_16x16x32_f16 {vr(ACC + 4 * k, 4)}, {vr(AF, 4)}, {vr(BF + 8 * k, 4)}, 0')
        a(f'v_mfma_f32_16x16x32_f16 {vr(ACC + 4 * k, 4)}, {vr(AF + 4, 4)}, {vr(BF + 8 * k + 4, 4)}, {vr(ACC + 4 * k, 4)}')
        if k < 3:
            square()
    cvtB(BF)
    A4 = BF + 8
    a(f'v_mfma_f32_16x16x32_f16 {vr(A4, 4)}, {vr(AF, 4)}, {vr(BF, 4)}, 0')
    a(f'v_mfma_f32_16x16x32_f16 {vr(A4, 4)}, {vr(AF + 4, 4)}, {vr(BF + 4, 4)}, {vr(A4, 4)}')
    a.stamp(2)
    a(f'''
    s_mul_i32 s44, s3, 2624
    v_lshrrev_b32 v2, 4, v0
    v_lshlrev_b32 v2, 6, v2
    v_and_b32 v3, 15, v0
    v_add_u32 v2, v2, v3
    v_lshlrev_b32 v2, 2, v2
    v_add_u32 v2, s44, v2
    ''')
    for i in range(16):
        a(f'v_mul_f32 v{ACC + i}, v{ACC + i}, v{FIN}')
    a(f'v_mul_f32 v{A4}, v{A4}, v{FIN}')
    for ii in range(4):
        a(f'ds_write_b32 v2, v{ACC + ii} offset:{64 * ii}')
    a('s_mov_b32 exec_lo, 0')
    for k in range(1, 4):
        for ii in range(4):
            a(f'ds_write_b32 v2, v{ACC + 4 * k + ii} offset:{512 * k + 64 * ii}')
    a('s_mov_b32 exec_hi, 0x100')
    a(f'ds_write_b32 v2, v{A4} offset:{(640 - 136) * 4}')
    a('s_mov_b64 exec, -1')
    a(f'''
    v_lshlrev_b32 v2, 4, v1
    s_waitcnt lgkmcnt(0)
    s_barrier
    v_cmp_gt_u32 vcc, 161, v1
    s_and_saveexec_b64 s[44:45], vcc
    s_cbranch_execz k1_kg_skip
    ds_read_b128 v[8:11], v2
    ds_read_b128 v[12:15], v2 offset:2624
    ds_read_b128 v[16:19], v2 offset:5248
    ds_read_b128 v[20:23], v2 offset:7872
    s_waitcnt lgkmcnt(0)
    v_pk_add_f32 v[8:9], v[8:9], v[12:13]
    v_pk_add_f32 v[10:11], v[10:11], v[14:15]
    v_pk_add_f32 v[16:17], v[16:17], v[20:21]
    v_pk_add_f32 v[18:19], v[18:19], v[22:23]
    v_pk_add_f32 v[8:9], v[8:9], v[16:17]
    v_pk_add_f32 v[10:11], v[10:11], v[18:19]
    ds_write_b128 v2, v[8:11] offset:10496
    ''')
    a.label('k1_kg_skip')
    a('s_mov_b64 exec, -1')
    a(f'''
    v_lshlrev_b32 v3, 3, v1
    v_sub_u32 v3, 2047, v3
    v_cmp_gt_u32 vcc, 240, v1
    ''')
    for e in range(8):
        a(f'v_subrev_u32 v{8 + e}, {e}, v3')
        a(f'v_cvt_f32_u32 v{16 + e}, v{8 + e}')
    for e in range(0, 8, 2):
        a(f'v_cvt_pk_bf16_f32 v{24}, v{16 + e}, v{17 + e}')
        a(f'v_and_b32 v{16 + e}, 0xffff, v24')
        a(f'v_lshrrev_b32 v{17 + e}, 16, v24')
    for e in range(8):
        a(f'v_subrev_u32 v{16 + e}, 17024, v{16 + e}')
        a(f'v_cndmask_b32 v{8 + e}, v{8 + e}, v{16 + e}, vcc')
        a(f'v_lshlrev_b32 v{8 + e}, 2, v{8 + e}')
    a('s_waitcnt lgkmcnt(0)')
    a('s_barrier')
    for e in range(8):
        a(f'ds_read_b32 v{16 + e}, v{8 + e} offset:10496')
    a(f'''
    s_mul_i32 s44, s2, {KRS}
    v_add_u32 v2, s44, v2
    v_mov_b32 v28, 0
    v_mov_b32 v29, 0
    v_mov_b32 v30, 0
    v_mov_b32 v31, 0
    s_waitcnt lgkmcnt(0)
    ''')
    for e in range(0, 8, 2):
        a(f'v_cvt_pk_bf16_f32 v{24 + e // 2}, v{16 + e}, v{17 + e}')
    a('buffer_store_dwordx4 v[24:27], v2, s[40:43], 0 offen offset:16')
    a(f'''
    v_cmp_eq_u32 vcc, 0, v1
    s_and_saveexec_b64 s[44:45], vcc
    s_cbranch_execz k1_kg_end
    v_add_u32 v2, 4096, v2
    buffer_store_dwordx4 v[28:31], v2, s[40:43], 0 offen offset:16
    ''')
    a.label('k1_kg_end')
    a.stamp(3)
    a.stamp_end(0, 5)
    a('s_endpgm')
    return a


KERNELS = []


def emit(out_path, kernels):
    hdr = open('sequential_preLN__ssm_conv_s4d__mixer_s_mlp__prompt.s.ref').read().split('\n')
    lines = [l for l in hdr if l.startswith(';') and '@launch' not in l]
    for (name, a, grid, block, lds) in kernels:
        lines.append(f'; @launch kernel={name} grid=({grid},1,1) block=({block},1,1) lds={lds}')
    lines.append('.amdgcn_target "amdgcn-amd-amdhsa--gfx950"')
    lines.append('.text')
    body = ''
    desc = '.section .rodata,"a"\n'
    seen = set()
    for (name, a, grid, block, lds) in kernels:
        if name in seen:
            continue
        seen.add(name)
        a.pad()
        body += f'.globl {name}\n.p2align 8\n.type {name},@function\n' + a.text()
        nv = (a.max_vgpr() + 7) // 8 * 8
        na = (a.max_agpr() + 7) // 8 * 8
        desc += f'''.p2align 6
.amdhsa_kernel {name}
  .amdhsa_next_free_vgpr {nv + na}
  .amdhsa_next_free_sgpr 102
  .amdhsa_accum_offset {nv}
  .amdhsa_group_segment_fixed_size 0
  .amdhsa_kernarg_size 120
  .amdhsa_user_sgpr_count 2
  .amdhsa_user_sgpr_kernarg_segment_ptr 1
  .amdhsa_system_sgpr_workgroup_id_x 1
.end_amdhsa_kernel
'''
        print(name, 'vgprs', nv, 'agprs', na, 'instrs', len(a.ins))
    open(out_path, 'w').write('\n'.join(lines) + '\n' + body + desc)


if __name__ == '__main__':
    ks = [('k1_kernel', gen_k1(), K1_GRID, 256, K1_LDS)]
    try:
        from gen2 import more_kernels
        ks += more_kernels()
    except ImportError:
        pass
    out = sys.argv[1] if len(sys.argv) > 1 else 'sequential_preLN__ssm_conv_s4d__mixer_s_mlp__prompt.s'
    emit(out, ks)
```

```python
import re, os
STAMP = int(os.environ.get('STAMP', '0'))
STAMP_OFF = 0x4000000

TRANS = ('v_exp_f32', 'v_log_f32', 'v_rcp_f32', 'v_rsq_f32', 'v_sqrt_f32', 'v_sin_f32', 'v_cos_f32',
         'v_rcp_iflag_f32', 'v_exp_f16', 'v_log_f16', 'v_rcp_f16', 'v_rsq_f16', 'v_sqrt_f16')


def regs_of(op):
    op = op.strip()
    op = op.lstrip('-')
    if op.startswith('|'):
        op = op.strip('|')
    m = re.match(r'^(neg|abs)\((.*)\)$', op)
    if m:
        op = m.group(2)
    m = re.match(r'^([vsa])(\d+)$', op)
    if m:
        return {(m.group(1), int(m.group(2)))}
    m = re.match(r'^([vsa])\[(\d+):(\d+)\]$', op)
    if m:
        return {(m.group(1), i) for i in range(int(m.group(2)), int(m.group(3)) + 1)}
    if op == 'vcc':
        return {('s', 106), ('s', 107)}
    if op == 'vcc_lo':
        return {('s', 106)}
    if op == 'vcc_hi':
        return {('s', 107)}
    if op == 'exec':
        return {('s', 126), ('s', 127)}
    if op == 'exec_lo':
        return {('s', 126)}
    if op == 'exec_hi':
        return {('s', 127)}
    if op == 'm0':
        return {('s', 124)}
    return set()


class Ins:
    __slots__ = ('text', 'mn', 'ops', 'mods', 'kind', 'w', 'r', 'srcC', 'srcAB', 'passes', 'label', 'target',
                 'dpp', 'wide_store', 'ldsdma', 'states')

    def __init__(self, text):
        self.text = text
        self.label = None
        self.target = None
        self.w = set(); self.r = set(); self.srcC = set(); self.srcAB = set()
        self.passes = 0; self.dpp = False; self.wide_store = set(); self.ldsdma = False
        self.states = 1
        t = text.split(';')[0].strip()
        if t.endswith(':'):
            self.label = t[:-1]; self.kind = 'label'; self.mn = ''; self.states = 0
            return
        if t == '' or t.startswith('.'):
            self.kind = 'none'; self.mn = ''; self.states = 0
            return
        parts = t.split(None, 1)
        mn = parts[0]
        self.mn = mn
        rest = parts[1] if len(parts) > 1 else ''
        ops = []; depth = 0; cur = ''
        for ch in rest:
            if ch in '[(':
                depth += 1
            if ch in '])':
                depth -= 1
            if ch == ',' and depth == 0:
                ops.append(cur.strip()); cur = ''
            else:
                cur += ch
        if cur.strip():
            ops.append(cur.strip())
        mods = ''
        if ops:
            last = ops[-1].split(None, 1)
            if len(last) > 1:
                ops[-1] = last[0]; mods = last[1]
        self.ops = ops; self.mods = mods
        R = [regs_of(o) for o in ops]
        base = re.sub(r'_(e32|e64|dpp|sdwa)$', '', mn)
        if mn.startswith('v_mfma') or mn.startswith('v_smfmac'):
            self.kind = 'mfma'
            self.w = R[0]; self.srcAB = R[1] | R[2]; self.srcC = R[3]; self.r = self.srcAB | self.srcC
            self.passes = 8 if '32x32' in mn else 4
        elif mn.startswith('v_'):
            self.kind = 'valu'
            if base in TRANS:
                self.kind = 'trans'
            if base.startswith('v_dot'):
                self.kind = 'dot'
            if 'row_' in mods or 'quad_perm' in mods or 'wave_' in mods or mn.endswith('_dpp'):
                self.dpp = True
            if base.startswith('v_cmp'):
                if base.startswith('v_cmpx'):
                    raise Exception('avoid v_cmpx')
                self.w = R[0]; self.r = set().union(*R[1:])
            elif base.startswith('v_permlane') and 'swap' in base:
                self.w = R[0] | R[1]; self.r = R[0] | R[1]; self.kind = 'permlane'
            elif base in ('v_readfirstlane_b32', 'v_readlane_b32'):
                self.kind = 'readlane'
                self.w = R[0]; self.r = set().union(*R[1:])
            elif base in ('v_add_co_u32', 'v_sub_co_u32', 'v_subrev_co_u32', 'v_addc_co_u32', 'v_subb_co_u32',
                          'v_div_scale_f32'):
                self.w = R[0] | R[1]; self.r = set().union(*R[2:])
            elif base == 'v_nop':
                pass
            else:
                self.w = R[0]; self.r = set().union(*R[1:]) if len(R) > 1 else set()
                if base.startswith('v_fmac') or base.startswith('v_mac') or base.startswith('v_dot2c') or \
                        base.startswith('v_pk_fmac') or self.dpp or base == 'v_writelane_b32' or base.startswith('v_dot4c'):
                    self.r |= R[0]
                if base == 'v_cndmask_b32' and len(ops) == 3:
                    self.r |= regs_of('vcc')
        elif mn.startswith('ds_'):
            self.kind = 'ds'
            if mn.startswith('ds_read') or mn.startswith('ds_bpermute') or mn.startswith('ds_permute') or \
                    mn.startswith('ds_swizzle') or '_rtn' in mn:
                self.w = R[0]; self.r = set().union(*R[1:])
                if 'd16' in mn:
                    self.r |= R[0]
            else:
                self.r = set().union(*R)
        elif mn.startswith('buffer_') or mn.startswith('global_') or mn.startswith('flat_'):
            self.kind = 'vmem'
            islds = (' lds' in (' ' + mods)) or '_lds_' in mn
            if 'load' in mn and not islds:
                self.w = R[0]; self.r = set().union(*R[1:])
                if 'd16' in mn:
                    self.r |= R[0]
            else:
                self.r = set().union(*R)
                if islds:
                    self.ldsdma = True
                    self.r |= regs_of('m0')
                if 'store' in mn and ('x3' in mn or 'x4' in mn):
                    self.wide_store = R[0] if mn.startswith('buffer_') else R[1]
        elif mn.startswith('s_'):
            self.kind = 'salu'
            if mn == 's_nop':
                self.states = int(ops[0], 0) + 1
            elif mn.startswith('s_cbranch') or mn == 's_branch':
                self.kind = 'branch'; self.target = ops[0]
            elif mn.startswith('s_cmp') or mn.startswith('s_waitcnt') or mn in ('s_barrier', 's_endpgm', 's_setprio',
                                                                             's_sleep') or mn.startswith('s_bitcmp'):
                self.r = set().union(*R) if R else set()
            elif mn.startswith('s_load') or mn.startswith('s_buffer_load') or mn.startswith('s_mem'):
                self.kind = 'smem'
                self.w = R[0]; self.r = set().union(*R[1:])
            else:
                self.w = R[0]; self.r = set().union(*R[1:]) if len(R) > 1 else set()
                if 'saveexec' in mn:
                    self.w |= regs_of('exec'); self.r |= regs_of('exec')
        else:
            raise Exception('unknown instr ' + text)


VALUK = ('valu', 'trans', 'dot', 'permlane', 'readlane')


def need(p, c):
    n = 0
    pv = {x for x in p.w if x[0] in 'va'}
    ps = {x for x in p.w if x[0] == 's'}
    if p.kind in VALUK:
        if pv:
            if c.kind == 'mfma' and (pv & c.r):
                n = max(n, 2)
            if c.dpp and (pv & c.r):
                n = max(n, 2)
            if c.kind == 'permlane' and (pv & c.r):
                n = max(n, 2)
            if c.kind == 'readlane' and (pv & c.r):
                n = max(n, 1)
            if p.kind == 'trans' and c.kind in VALUK and c.kind != 'trans' and (pv & c.r):
                n = max(n, 1)
            if p.kind == 'trans' and c.kind == 'trans' and (pv & c.r):
                n = max(n, 1)
            if p.kind == 'dot':
                if c.kind == 'dot' and c.mn == p.mn:
                    ab = set().union(*[regs_of(o) for o in c.ops[1:3]])
                    if pv & ab:
                        n = max(n, 3)
                elif (pv & (c.r | c.w)):
                    n = max(n, 3)
        if ps:
            if c.kind in VALUK and (ps & c.r):
                n = max(n, 4 if c.kind == 'readlane' else 2)
            if c.kind == 'vmem' and (ps & c.r):
                n = max(n, 5)
            if c.kind == 'mfma' and (ps & regs_of('exec')):
                n = max(n, 4)
    if p.kind == 'mfma':
        big = p.passes == 8
        if c.kind == 'mfma':
            if p.w & c.srcAB:
                n = max(n, 12 if big else 8)
            if p.w & c.srcC:
                if not (p.w == c.srcC and p.passes == c.passes):
                    n = max(n, 10 if big else 6)
            elif p.w & c.w:
                n = max(n, 12 if big else 8)
        elif c.kind in VALUK or c.kind in ('vmem', 'ds'):
            if p.w & (c.r | c.w):
                n = max(n, 12 if big else 8)
            if c.kind in VALUK and (p.srcC & c.w):
                n = max(n, 7 if big else 3)
    if p.kind == 'salu' and (('s', 124) in p.w) and c.ldsdma:
        n = max(n, 1)
    if p.wide_store and (p.wide_store & c.w):
        n = max(n, 2 if c.kind in VALUK + ('mfma',) else 1)
    return n


class Asm:
    def __init__(self):
        self.ins = []

    def __call__(self, text):
        for line in text.split('\n'):
            line = line.strip()
            if line:
                self.ins.append(Ins(line))

    def label(self, name):
        self.ins.append(Ins(name + ':'))

    def stamp(self, i):
        if STAMP:
            if i == 0:
                self('s_mov_b32 s59, s2')
            self(f's_memrealtime s[{60 + 2 * i}:{61 + 2 * i}]')

    def stamp_end(self, kidx, n):
        if not STAMP:
            return
        self('s_waitcnt vmcnt(0)')
        self.stamp(n - 1)
        self(f'''
        s_mov_b64 exec, -1
        s_add_u32 s48, s4, 0x{STAMP_OFF:x}
        s_addc_u32 s49, s5, 0
        s_mov_b32 s50, 0x4000000
        s_mov_b32 s51, 0x00020000
        s_add_u32 s52, s59, {kidx * 2048}
        s_lshl_b32 s52, s52, 4
        s_add_u32 s52, s52, s3
        s_lshl_b32 s52, s52, 8
        v_mbcnt_lo_u32_b32 v2, -1, 0
        v_mbcnt_hi_u32_b32 v2, -1, v2
        v_lshlrev_b32 v2, 2, v2
        v_mov_b32 v1, 0
        s_waitcnt lgkmcnt(0)
        ''')
        for i in range(n):
            self(f'v_writelane_b32 v1, s{60 + 2 * i}, {i}')
        self('buffer_store_dword v1, v2, s[48:51], s52 offen')

    def mst(self, name=''):
        if not STAMP:
            return
        i = getattr(self, 'nst', 0)
        self.nst = i + 1
        if not hasattr(self, 'stnames'):
            self.stnames = []
        self.stnames.append(name)
        self(f's_memrealtime s[{96 + 2 * (i & 1)}:{97 + 2 * (i & 1)}]')
        if i > 0:
            self(f'v_writelane_b32 v2, s{96 + 2 * ((i - 1) & 1)}, {i - 1}')

    def mst_end(self, kidx):
        if not STAMP:
            return
        self('s_waitcnt vmcnt(0)')
        self.mst('end')
        i = self.nst
        self(f"""
        s_waitcnt lgkmcnt(0)
        v_writelane_b32 v2, s{96 + 2 * ((i - 1) & 1)}, {i - 1}
        s_mov_b64 exec, -1
        s_add_u32 s48, s4, 0x{STAMP_OFF:x}
        s_addc_u32 s49, s5, 0
        s_mov_b32 s50, 0x4000000
        s_mov_b32 s51, 0x00020000
        s_add_u32 s52, s2, {kidx * 2048}
        s_lshl_b32 s52, s52, 4
        s_add_u32 s52, s52, s3
        s_lshl_b32 s52, s52, 8
        v_lshlrev_b32 v4, 2, v0
        s_nop 4
        buffer_store_dword v2, v4, s[48:51], s52 offen
        """)
        open('stnames.txt', 'w').write('\n'.join(self.stnames))

    def pad(self):
        HIST = 16
        out = []
        labels = {}
        src = self.ins
        for i, x in enumerate(src):
            if x.label:
                labels[x.label] = i

        def required(hist, c):
            dist = 0
            req = 0
            for p in reversed(hist):
                if p.states == 0:
                    continue
                nn = need(p, c)
                if nn > dist:
                    req = max(req, nn - dist)
                dist += p.states
                if dist >= HIST:
                    break
            return req

        for i, x in enumerate(src):
            if x.kind in ('label', 'none'):
                out.append(x); continue
            req = required(out[-40:], x)
            if x.kind == 'branch':
                j = labels.get(x.target)
                assert j is not None, x.target
                for extra in range(0, 16):
                    h = out[-40:] + ([Ins('s_nop %d' % (extra - 1))] if extra else []) + [x]
                    ok = True
                    d = 0
                    k = j
                    hh = list(h)
                    while d < HIST and k < len(src):
                        y = src[k]; k += 1
                        if y.states == 0:
                            continue
                        dist = 0
                        for p in reversed(hh):
                            if p.states == 0:
                                continue
                            if any(p is q for q in h):
                                if need(p, y) > dist:
                                    ok = False
                            dist += p.states
                            if dist >= HIST:
                                break
                        if not ok:
                            break
                        hh.append(y); d += y.states
                        if y.mn in ('s_branch', 's_endpgm'):
                            break
                    if ok:
                        req = max(req, extra)
                        break
            while req > 0:
                k = min(req, 16)
                out.append(Ins('s_nop %d' % (k - 1)))
                req -= k
            out.append(x)
        self.ins = out

    def text(self):
        o = []
        for x in self.ins:
            if x.kind == 'label':
                o.append(x.text)
            else:
                o.append('    ' + x.text)
        return '\n'.join(o) + '\n'

    def max_vgpr(self):
        m = 0
        for x in self.ins:
            for (t, n) in (x.w | x.r):
                if t == 'v':
                    m = max(m, n)
        return m + 1


def _max_agpr(self):
    m = -1
    for x in self.ins:
        for (t, n) in (x.w | x.r):
            if t == 'a':
                m = max(m, n)
    return m + 1


Asm.max_agpr = _max_agpr


def ar(a, n=1):
    return 'a%d' % a if n == 1 else 'a[%d:%d]' % (a, a + n - 1)


def xr(a, n=1):
    return vr(a, n) if a < 256 else ar(a - 256, n)


def vr(a, n=1):
    return 'v%d' % a if n == 1 else 'v[%d:%d]' % (a, a + n - 1)


def sr(a, n=1):
    return 's%d' % a if n == 1 else 's[%d:%d]' % (a, a + n - 1)


import struct


def f2u(x):
    return struct.unpack('<I', struct.pack('<f', x))[0]


def fl(x):
    return '0x%08x' % f2u(x)
```

```python
import sys, os, math
sys.path.insert(0, 'dbg')
from asmlib import *
from gen import *
from gen2 import unpack2
from gen3 import GK, gelu4, round4, xreduce, ln_scale, wg_map
from gen5 import fm_lane, tile_off, reduce_write, reduce_read, reduce_add

DBG = int(os.environ.get('DBG', '0'))
FULL = int(os.environ.get('FULL', '0'))
MF = 'v_mfma_f32_16x16x32_bf16'
FL = (WS_END + 4095) // 4096 * 4096
FA_ = 0; FC_ = 4096; F1_ = 8192; F2_ = 12288; F3_ = 16384; FL_SZ = 20480
WP_SZ = 2 * D * D * 2 + 2 * D * F * 2
MK_LDS = 163840
XP = 146; HH = 156; X1R = 166
W1Q = [392 + 4 * k for k in range(25)]
W2Q = [292 + 4 * k for k in range(25)]
W3E = [212 + 4 * k for k in range(20)] + [492 + 4 * k for k in range(5)]
W3M = [392 + 4 * k for k in range(25)] + [192 + 4 * k for k in range(5)]
W3L = [292 + 4 * k for k in range(25)]
W3Q = W3E + W3M + W3L
W4Q = [192 + 4 * k for k in range(70)]
RB = 81920
SB = RB + 61440
CSB = SB + 2048
uid = [0]


def lab(p):
    uid[0] += 1
    return f'mk_{p}{uid[0]}'


def nonce_issue(a, v):
    a(f'buffer_load_dword v{v}, off, s[12:15], 0 sc1') if False else None


def signal(a, base, sidx, vt=30):
    a(f'''
    s_lshl_b32 s28, s{sidx}, 2
    s_add_u32 s28, s28, {base}
    v_mov_b32 v{vt}, s88
    s_waitcnt vmcnt(0)
    s_mov_b64 exec, 1
    buffer_store_dword v{vt}, off, s[92:95], s28 sc1
    s_mov_b64 exec, -1
    ''')


def poll(a, va, vt=30, n=1):
    l = lab('poll'); e = lab('pdone')
    a('s_mov_b32 s89, 0x40000')
    a.label(l)
    if n == 1:
        a(f'buffer_load_dword v{vt}, v{va}, s[92:95], 0 offen sc1')
        a('s_waitcnt vmcnt(0)')
        a(f'v_cmp_ne_u32 vcc, s88, v{vt}')
    else:
        a(f'buffer_load_dwordx4 {vr(vt, 4)}, v{va}, s[92:95], 0 offen sc1')
        a('s_waitcnt vmcnt(0)')
        for i in range(4):
            a(f'v_xor_b32 v{vt + i}, s88, v{vt + i}')
        a(f'v_or3_b32 v{vt}, v{vt}, v{vt + 1}, v{vt + 2}')
        a(f'v_or_b32 v{vt}, v{vt}, v{vt + 3}')
        a(f'v_cmp_ne_u32 vcc, 0, v{vt}')
    a(f'''
    s_cbranch_vccz {e}
    s_sub_u32 s89, s89, 1
    s_cmp_lg_u32 s89, 0
    s_cbranch_scc1 {l}
    ''')
    a.label(e)


def get_nonce(a, vt=30):
    l = lab('npoll'); e = lab('ndone')
    a('s_mov_b32 s89, 0x40000')
    a.label(l)
    a(f'''
    buffer_load_dword v{vt}, off, s[12:15], 0 sc1
    s_waitcnt vmcnt(0)
    v_readfirstlane_b32 s88, v{vt}
    s_cmp_lg_u32 s88, 0
    s_cbranch_scc1 {e}
    s_sub_u32 s89, s89, 1
    s_cmp_lg_u32 s89, 0
    s_cbranch_scc1 {l}
    ''')
    a.label(e)


def pf_w12(which):
    Q = W1Q if which == 1 else W2Q
    base = 0 if which == 1 else W2P - W1P
    out = []
    for i in range(5):
        for j in range(5):
            out.append(f's_add_u32 s83, s80, {base + i * 1024 + j * 20480}\n'
                       f'buffer_load_dwordx4 {xr(Q[5 * i + j], 4)}, v3, s[84:87], s83 offen sc1')
    return out


def pf_w3(lo, hi, vt2, vt3):
    out = []
    for k in range(lo, hi):
        tl, s = divmod(k, 20)
        va = [3, 3, vt2, vt3][tl]
        out.append(f's_add_u32 s83, s81, {tl * 20480 + s * 1024}\n'
                   f'buffer_load_dwordx4 {xr(W3Q[k], 4)}, v{va}, s[84:87], s83 offen sc1')
    return out


def pf_w4(it, vt):
    out = []
    for j in range(5):
        va = vt if it == 13 else 3
        out.append(f's_add_u32 s83, s82, {j * 54 * 1024 + it * 1024}\n'
                   f'buffer_load_dwordx4 {xr(W4Q[5 * it + j], 4)}, v{va}, s[84:87], s83 offen sc1')
    return out


def emit_all(a, lst):
    for x in lst:
        a(x)


def setup_common(a):
    wg_map(a)
    for i in range(4):
        a(f's_add_u32 s{30 + i}, s3, {i}')
        a(f's_and_b32 s{30 + i}, s{30 + i}, 3')
    a(f'''
    s_mov_b32 s90, {fl(GK * 0.044715)}
    s_mul_i32 s24, s23, 5
    s_mul_i32 s80, s24, 20480
    s_mul_i32 s26, s3, 5120
    s_add_u32 s80, s80, s26
    s_mul_i32 s74, s23, 13
    s_min_u32 s25, s23, 4
    s_add_u32 s74, s74, s25
    s_lshl_b32 s25, s3, 2
    s_min_u32 s25, s25, 11
    s_add_u32 s74, s74, s25
    s_mul_i32 s81, s74, 20480
    s_add_u32 s81, s81, {W3P - W1P}
    s_mul_i32 s25, s3, 13
    s_min_u32 s26, s3, 2
    s_add_u32 s73, s25, s26
    s_lshl_b32 s25, s73, 10
    s_mul_i32 s82, s24, {54 * 1024}
    s_add_u32 s82, s82, s25
    s_add_u32 s82, s82, {W4P - W1P}
    s_cmp_lt_u32 s3, 2
    s_cselect_b32 s77, 0, 0x40000000
    s_mov_b32 s79, s77
    s_cmp_eq_u32 s3, 3
    s_cselect_b32 s78, 4, 100
    s_cmp_ge_u32 s23, s78
    s_cselect_b32 s78, 0x40000000, 0
    ''')
    fm_lane(a, 20, 19, 18)


def srds_common(a):
    srd_from(a, 84, 4, W1P, WP_SZ)
    srd_from(a, 92, 4, FL, FL_SZ)


def g1_colsum(a):
    CSP = 32; ONES = 12
    for i in range(4):
        a(f'v_mov_b32 v{ONES + i}, 0x3f803f80')
    for i in range(5):
        for j in range(5):
            ac = vr(CSP + 4 * j, 4)
            a(f'{MF} {ac}, {xr(W1Q[5 * i + j], 4)}, {vr(ONES, 4)}, {"0" if i == 0 else ac}')
    a(f'''
    s_mul_i32 s28, s3, 320
    s_add_u32 s28, s28, {CSB}
    v_lshl_add_u32 v16, v7, 4, s28
    v_mov_b32 v17, {CSB}
    v_lshl_add_u32 v17, v7, 4, v17
    s_mov_b32 exec_lo, 0x00010001
    s_mov_b32 exec_hi, 0x00010001
    ''')
    for j in range(5):
        a(f'ds_write_b128 v16, {vr(CSP + 4 * j, 4)} offset:{64 * j}')
    a('''
    s_mov_b64 exec, -1
    s_waitcnt lgkmcnt(0)
    s_barrier
    ''')
    for w in range(4):
        for j in range(5):
            a(f'ds_read_b128 {vr(32 + 20 * w + 4 * j, 4)}, v17 offset:{320 * w + 64 * j}')
        if w == 1:
            a('s_waitcnt lgkmcnt(0)')
    a('s_waitcnt lgkmcnt(0)')
    for k in range(0, 20, 2):
        a(f'v_pk_add_f32 {vr(32 + k, 2)}, {vr(32 + k, 2)}, {vr(52 + k, 2)}')
        a(f'v_pk_add_f32 {vr(72 + k, 2)}, {vr(72 + k, 2)}, {vr(92 + k, 2)}')
    for k in range(0, 20, 2):
        a(f'v_pk_add_f32 {vr(192 + k, 2)}, {vr(32 + k, 2)}, {vr(72 + k, 2)}')


def g1(a, wait_fc):
    VDE = 4; VDO = 5; VB = 8; ONES = 12
    ACC = 32; SUM = 112; GR = 128; BF = 176; CS = 192
    a(f'''
    v_lshrrev_b32 v16, 3, v0
    v_and_b32 v17, 7, v0
    v_bfe_u32 v18, v0, 4, 1
    v_lshlrev_b32 v18, 2, v18
    v_xor_b32 v17, v17, v18
    v_lshlrev_b32 v{VDE}, 7, v16
    v_lshl_add_u32 v{VDE}, v17, 4, v{VDE}
    v_xor_b32 v{VDO}, 32, v{VDE}
    s_mul_i32 s27, s3, 20480
    s_mul_i32 s26, s22, 81920
    s_add_u32 s26, s26, s27
    ''')
    srd_from(a, 8, 4, HT, SZ_LD)
    srd_from(a, 16, 4, GS, 3 * SZ_LD)
    a(f'''
    v_lshrrev_b32 v16, 2, v6
    v_lshl_add_u32 v16, v7, 3, v16
    v_lshlrev_b32 v16, 7, v16
    v_and_b32 v17, 3, v6
    v_lshl_add_u32 v16, v17, 3, v16
    v_add_u32 v16, s27, v16
    v_lshrrev_b32 v17, 3, v6
    v_lshlrev_b32 v17, 1, v17
    v_and_b32 v18, 1, v7
    v_or_b32 v17, v17, v18
    ''')
    for i in range(4):
        a(f'v_mov_b32 v{ONES + i}, 0x3f803f80')
        a(f'v_xor_b32 v18, s{30 + i}, v17')
        a(f'v_lshl_add_u32 v{VB + i}, v18, 5, v16')
    if wait_fc:
        a(f'''
        s_lshr_b32 s28, s22, 3
        s_lshl_b32 s28, s28, 8
        s_lshl_b32 s29, s3, 6
        s_add_u32 s28, s28, s29
        s_lshl_b32 s28, s28, 2
        s_add_u32 s28, s28, {FC_}
        v_lshl_add_u32 v16, v0, 2, s28
        ''')
        a.mst('g1.prepoll')
        poll(a, 16)
    a.mst('g1.go')
    for i in range(5):
        for r in range(4):
            a(f's_add_u32 m0, s27, {i * 4096 + r * 1024}')
            a(f's_add_u32 s28, s26, {i * 4096 + r * 1024}')
            a(f'buffer_load_dwordx4 v{VDO if r & 1 else VDE}, s[8:11], s28 offen sc1 lds')
    for i in range(5):
        a(f's_waitcnt vmcnt({4 * (4 - i)})')
        if i in (0, 4):
            a.mst(f'g1.c{i}')
        for r in range(4):
            a(f'ds_read_b64_tr_b16 {vr(BF + 4 * r, 2)}, v{VB + r} offset:{i * 4096}')
            a(f'ds_read_b64_tr_b16 {vr(BF + 4 * r + 2, 2)}, v{VB + r} offset:{i * 4096 + 512}')
        order = [1, 2, 3, 0] if i == 4 else [0, 1, 2, 3]
        for n, r in enumerate(order):
            if i == 4:
                if n == 0:
                    a('s_waitcnt lgkmcnt(4)')
                elif n < 3:
                    a(f's_waitcnt lgkmcnt({4 - 2 * n})')
            else:
                a(f's_waitcnt lgkmcnt({6 - 2 * r})')
            b = vr(BF + 4 * r, 4)
            for j in range(5):
                ac = vr(ACC + 20 * r + 4 * j, 4)
                a(f'{MF} {ac}, {xr(W1Q[5 * i + j], 4)}, {b}, {"0" if i == 0 else ac}')
            ac = vr(SUM + 4 * r, 4)
            a(f'{MF} {ac}, {vr(ONES, 4)}, {b}, {"0" if i == 0 else ac}')
            ac = vr(GR + 4 * r, 4)
            a(f'{MF} {ac}, {b}, {b}, {"0" if i == 0 else ac}')
    a.mst('g1.mf')
    reduce_write(a, ACC, RB, 16)
    a(f'''
    s_mov_b32 s34, 0x22222222
    s_mov_b32 s35, 0x22222222
    s_mov_b32 s38, 0x88888888
    s_mov_b32 s39, 0x88888888
    s_mov_b32 s40, 0xcccccccc
    s_mov_b32 s41, 0xcccccccc
    v_lshlrev_b32 v19, 3, v6
    ''')
    for r in range(4):
        g = GR + 4 * r
        a(f'v_cndmask_b32 v{g}, v{g}, v{g + 1}, s[34:35]')
        a(f'v_cndmask_b32 v{g + 2}, v{g + 2}, v{g + 3}, s[38:39]')
        a(f'v_cndmask_b32 v{SUM + 4 * r + 1}, v{g}, v{g + 2}, s[40:41]')
        a(f's_lshl_b32 s28, s{30 + r}, 9')
        a(f's_add_u32 s28, s28, {SB + r * 128}')
        a(f'v_add_u32 v{24 + r}, s28, v19')
    a('s_mov_b32 exec_lo, 0x00F0000F')
    a('s_mov_b32 exec_hi, 0xF0000F00')
    for r in range(4):
        a(f'ds_write_b64 v{24 + r}, {vr(SUM + 4 * r, 2)}')
    a('s_mov_b64 exec, -1')
    a(f'''
    v_lshrrev_b32 v16, 2, v6
    v_lshl_add_u32 v16, v7, 2, v16
    s_lshl_b32 s28, s24, 4
    v_add_u32 v16, s28, v16
    v_lshlrev_b32 v16, 7, v16
    v_and_b32 v17, 3, v6
    v_lshl_add_u32 v16, v17, 3, v16
    v_lshrrev_b32 v17, 3, v6
    v_lshlrev_b32 v17, 1, v17
    v_lshrrev_b32 v18, 1, v7
    v_or_b32 v17, v17, v18
    v_xor_b32 v17, s3, v17
    v_lshl_add_u32 v16, v17, 5, v16
    s_lshl_b32 s28, s3, 9
    s_add_u32 s28, s28, {SB}
    v_add_u32 v19, s28, v19
    s_waitcnt lgkmcnt(0)
    s_barrier
    ''')
    SS = BF
    for r in range(4):
        a(f'ds_read_b64 {vr(SS + 2 * r, 2)}, v19 offset:{r * 128}')
    for j in range(5):
        a(f'ds_read_b64_tr_b16 {vr(HH + 2 * j, 2)}, v16 offset:{j * 2048}')
    reduce_read(a, ACC, RB, 17)
    a(f'''
    v_lshlrev_b32 v19, 4, v6
    v_sub_u32 v19, v20, v19
    s_lshr_b32 s28, s23, 1
    s_lshr_b32 s29, s28, 1
    s_add_u32 s29, s29, 1
    s_sub_u32 s38, 0, s29
    s_bitcmp1_b32 s28, 0
    s_cselect_b32 s38, s38, s29
    s_lshl_b32 s39, s22, 6
    s_add_u32 s39, s39, s38
    s_lshl_b32 s28, s3, 4
    s_add_u32 s39, s39, s28
    v_add_u32 v21, s39, v6
    v_cmp_gt_u32 vcc, 2048, v21
    v_and_b32 v21, 2047, v21
    v_lshrrev_b32 v22, 4, v21
    v_and_b32 v21, 15, v21
    v_mul_u32_u24 v22, 20480, v22
    v_lshl_add_u32 v21, v21, 4, v19
    v_add_u32 v21, v21, v22
    s_lshl_b32 s34, s22, 2
    s_add_u32 s34, s34, s3
    s_mul_i32 s34, s34, 20480
    s_waitcnt lgkmcnt(15)
    v_pk_add_f32 {vr(SS, 2)}, {vr(SS, 2)}, {vr(SS + 2, 2)}
    v_pk_add_f32 {vr(SS + 4, 2)}, {vr(SS + 4, 2)}, {vr(SS + 6, 2)}
    v_pk_add_f32 {vr(SS, 2)}, {vr(SS, 2)}, {vr(SS + 4, 2)}
    ''')
    M1 = 24; R1 = 26; C1 = 28; C2 = 30; MEAN = 25; VAR = 27; S1 = 29; S2 = 31; M2 = 23; T = 22
    a(f'''
    v_mul_f32 v{MEAN}, {fl(1.0 / 640)}, v{SS}
    v_mul_f32 v{VAR}, {fl(1.0 / 640)}, v{SS + 1}
    v_fma_f32 v{VAR}, -v{MEAN}, v{MEAN}, v{VAR}
    v_max_f32 v{VAR}, 0, v{VAR}
    ''')
    bf16r(a, M1, MEAN)
    ln_scale(a, S1, VAR, T)
    a(f'''
    v_rcp_f32 v{R1}, v{S1}
    v_sub_f32 v{M2}, v{MEAN}, v{M1}
    v_mul_f32 v{M2}, v{M2}, v{R1}
    v_mul_f32 v{VAR}, v{VAR}, v{R1}
    v_mul_f32 v{VAR}, v{VAR}, v{R1}
    ''')
    bf16r(a, M2, M2)
    ln_scale(a, S2, VAR, T)
    a(f'''
    v_fma_f32 v{C1}, v{M2}, v{S1}, v{M1}
    v_mul_f32 v{C2}, v{S1}, v{S2}
    v_rcp_f32 v{C2}, v{C2}
    ''')
    TT = 124; P = 128; Y = 140
    for j in range(5):
        a(f's_add_u32 s28, s24, {j}')
        tile_off(a, 40 + j, 28, 35)
        a(f's_waitcnt lgkmcnt({12 - 3 * j})')
        reduce_add(a, ACC, j)
        X = ACC + 4 * j
        for h in range(2):
            a(f'v_pk_fma_f32 {vr(X + 2 * h, 2)}, {vr(CS + 4 * j + 2 * h, 2)}, {vr(C1, 2)}, {vr(X + 2 * h, 2)} op_sel_hi:[1,0,1] neg_lo:[1,0,0] neg_hi:[1,0,0]')
        for h in range(2):
            a(f'v_pk_mul_f32 {vr(X + 2 * h, 2)}, {vr(X + 2 * h, 2)}, {vr(C2, 2)} op_sel_hi:[1,0]')
        round4(a, X, TT)
        gelu4(a, X, TT)
        p = P + 2 * j
        a(f'v_cvt_pk_bf16_f32 v{p}, v{X}, v{X + 1}')
        a(f'v_cvt_pk_bf16_f32 v{p + 1}, v{X + 2}, v{X + 3}')
        a(f'v_cndmask_b32 v{p}, 0, v{p}, vcc')
        a(f'v_cndmask_b32 v{p + 1}, 0, v{p + 1}, vcc')
        a(f'buffer_store_dwordx2 {vr(p, 2)}, v21, s[16:19], s{40 + j} offen sc1')
    a.mst('g1.st')
    for j in range(5):
        unpack2(a, Y, HH + 2 * j)
        unpack2(a, Y + 2, HH + 2 * j + 1)
        for h in range(2):
            a(f'v_pk_add_f32 {vr(Y + 2 * h, 2)}, {vr(Y + 2 * h, 2)}, {vr(M1, 2)} op_sel_hi:[1,0] neg_lo:[0,1] neg_hi:[0,1]')
        round4(a, Y, TT)
        for h in range(2):
            a(f'v_pk_mul_f32 {vr(Y + 2 * h, 2)}, {vr(Y + 2 * h, 2)}, {vr(R1, 2)} op_sel_hi:[1,0]')
        a(f'v_cvt_pk_bf16_f32 v{XP + 2 * j}, v{Y}, v{Y + 1}')
        a(f'v_cvt_pk_bf16_f32 v{XP + 2 * j + 1}, v{Y + 2}, v{Y + 3}')
        if DBG:
            a(f's_add_u32 s29, s{40 + j}, s34')
            a(f's_add_u32 s28, s29, {HE - GS}')
            a(f'buffer_store_dwordx2 {vr(HH + 2 * j, 2)}, v20, s[16:19], s28 offen')
            a(f's_add_u32 s28, s29, {XPE - GS}')
            a(f'buffer_store_dwordx2 {vr(XP + 2 * j, 2)}, v20, s[16:19], s28 offen')
    a(f'''
    s_lshl_b32 s29, s23, 7
    s_lshl_b32 s35, s22, 2
    s_add_u32 s29, s29, s35
    s_add_u32 s29, s29, s3
    ''')
    signal(a, F1_, 29)
    a.mst('g1.sig')
    a('s_barrier')


def g2(a):
    ACC = 32; BF = 112
    a('v_add_u32 v4, s78, v3')
    a('v_add_u32 v5, s79, v3')
    emit_all(a, pf_w3(25, 55, 4, 5))
    a(f'''
    s_mul_i32 s26, s3, 5120
    s_mul_i32 s27, s3, 20480
    s_lshl_b32 s29, s22, 2
    ''')
    for i in range(4):
        a(f's_add_u32 s{34 + i}, s29, s{30 + i}')
        a(f's_mul_i32 s{34 + i}, s{34 + i}, 20480')
        a(f's_add_u32 s{34 + i}, s{34 + i}, s26')
    srd_from(a, 8, 4, GS, SZ_LD)
    srd_from(a, 16, 4, X1, SZ_LD)
    srd_from(a, 44, 4, ST3, 131072)
    a('s_sub_u32 s43, s34, s26')
    for j in range(5):
        a(f's_add_u32 s28, s24, {j}')
        tile_off(a, 48 + j, 28, 29)
        a(f's_add_u32 s{48 + j}, s{48 + j}, s43')
    a(f'''
    v_and_b32 v16, 7, v0
    v_min_u32 v16, 4, v16
    s_and_b32 s28, s3, 1
    s_lshl_b32 s29, s22, 2
    s_add_u32 s28, s28, s29
    s_sub_u32 s28, s28, 1
    v_add_u32 v16, s28, v16
    v_and_b32 v16, 127, v16
    v_bfe_u32 v17, v0, 3, 1
    v_lshl_add_u32 v16, v17, 7, v16
    s_lshl_b32 s28, s3, 8
    v_add_u32 v16, s28, v16
    v_lshlrev_b32 v16, 2, v16
    v_add_u32 v16, {F1_}, v16
    v_add_u32 v8, s27, v3
    ''')
    a.mst('g2.prepoll')
    poll(a, 16)
    a.mst('g2.go')
    for i in range(5):
        for r in range(4):
            a(f's_add_u32 m0, s27, {i * 4096 + r * 1024}')
            a(f's_add_u32 s28, s{34 + r}, {i * 1024}')
            a(f'buffer_load_dwordx4 v3, s[8:11], s28 offen sc1 lds')

    def reads(i):
        for r in range(4):
            a(f'ds_read_b128 {vr(BF + 16 * (i & 1) + 4 * r, 4)}, v8 offset:{i * 4096 + r * 1024}')
    a('s_waitcnt vmcnt(16)')
    a.mst('g2.c0')
    reads(0)
    for i in range(5):
        if i < 4:
            a(f's_waitcnt vmcnt({4 * (3 - i)})')
            reads(i + 1)
            a('s_waitcnt lgkmcnt(4)')
        else:
            a('s_waitcnt lgkmcnt(0)')
        for r in ([1, 2, 3, 0] if i == 4 else [0, 1, 2, 3]):
            b = vr(BF + 16 * (i & 1) + 4 * r, 4)
            for j in range(5):
                ac = vr(ACC + 20 * r + 4 * j, 4)
                a(f'{MF} {ac}, {xr(W2Q[5 * i + j], 4)}, {b}, {"0" if i == 0 else ac}')
    a.mst('g2.mf')
    reduce_write(a, ACC, RB, 16)
    a('s_waitcnt lgkmcnt(0)')
    a('s_barrier')
    reduce_read(a, ACC, RB, 16)
    a(f'''
    s_lshl_b32 s28, s22, 3
    s_add_u32 s28, s28, s23
    s_lshl_b32 s28, s28, 2
    s_add_u32 s41, s28, s3
    s_lshl_b32 s42, s41, 7
    v_lshlrev_b32 v21, 3, v6
    ''')
    Y = 112; P = 116; SA = 24; SQ = 26
    for j in range(5):
        a(f's_waitcnt lgkmcnt({12 - 3 * j})')
        reduce_add(a, ACC, j)
        X = ACC + 4 * j
        round4(a, X, P)
        unpack2(a, Y, XP + 2 * j)
        unpack2(a, Y + 2, XP + 2 * j + 1)
        for h in range(2):
            a(f'v_pk_add_f32 {vr(X + 2 * h, 2)}, {vr(X + 2 * h, 2)}, {vr(Y + 2 * h, 2)}')
        p = X1R + 2 * j
        round4(a, X, p)
        a(f'buffer_store_dwordx2 {vr(p, 2)}, v20, s[16:19], s{48 + j} offen sc1')
        for h in range(2):
            x = vr(X + 2 * h, 2)
            if j == 0 and h == 0:
                a(f'v_mov_b32 v{SA}, v{X}'); a(f'v_mov_b32 v{SA + 1}, v{X + 1}')
                a(f'v_pk_mul_f32 {vr(SQ, 2)}, {x}, {x}')
            else:
                a(f'v_pk_add_f32 {vr(SA, 2)}, {vr(SA, 2)}, {x}')
                a(f'v_pk_fma_f32 {vr(SQ, 2)}, {x}, {x}, {vr(SQ, 2)}')
    a(f'v_add_f32 v{SA}, v{SA}, v{SA + 1}')
    a(f'v_add_f32 v{SA + 1}, v{SQ}, v{SQ + 1}')
    xreduce(a, SA, SQ); xreduce(a, SA + 1, SQ + 1)
    a('s_mov_b64 exec, 0xffff')
    a(f'buffer_store_dwordx2 {vr(SA, 2)}, v21, s[44:47], s42 offen sc1')
    a('s_mov_b64 exec, -1')
    a.mst('g2.st')
    signal(a, F2_, 41)
    a.mst('g2.sig')


def g3(a):
    ACC = 32; BF = 64; CS = 176; STT = 128; ONES = 12
    a('v_add_u32 v4, s78, v3')
    a('v_add_u32 v5, s79, v3')
    emit_all(a, pf_w3(55, 80, 4, 5))
    for i in range(4):
        a(f'v_mov_b32 v{ONES + i}, 0x3f803f80')
    srd_from(a, 8, 4, X1, SZ_LD)
    srd_from(a, 16, 4, H3, L * F * 2)
    srd_from(a, 44, 4, ST3, 131072)
    def cs(ks):
        for k in ks:
            tl, s = divmod(k, 20)
            ac = vr(CS + 4 * tl, 4)
            a(f'{MF} {ac}, {xr(W3Q[k], 4)}, {vr(ONES, 4)}, {"0" if s == 0 else ac}')
    o1 = [tl * 20 + s for s in range(20) for tl in range(3) if tl * 20 + s < 55]
    cs(o1)
    a(f'''
    s_mul_i32 s27, s3, 5120
    s_mul_i32 s26, s22, 81920
    s_add_u32 s26, s26, s27
    v_lshlrev_b32 v17, 10, v7
    v_lshl_add_u32 v17, v6, 3, v17
    s_lshl_b32 s35, s22, 12
    v_add_u32 v8, 40960, v3
    v_and_b32 v16, 31, v0
    s_lshl_b32 s28, s22, 7
    s_add_u32 s28, s28, {F2_}
    v_lshl_add_u32 v16, v16, 2, s28
    s_lshl_b32 s29, s22, 2
    ''')
    for r in range(4):
        a(f's_add_u32 s{36 + r}, s29, {r}')
        a(f's_mul_i32 s{36 + r}, s{36 + r}, {54 * 1024}')
    for tl in range(4):
        a(f's_add_u32 s28, s74, {tl}')
        tile_off(a, 40 + tl, 28, 29)
    a('v_add_u32 v21, s78, v20')
    a('v_add_u32 v22, s79, v20')
    a('s_waitcnt vmcnt(0)')
    o2 = []
    for s in range(20):
        o2.append(60 + s)
        if s < 5:
            o2.append(55 + s)
    cs(o2)
    a.mst('g3.prepoll')
    poll(a, 16)
    a.mst('g3.go')
    for r in range(4):
        for h in range(2):
            a(f'buffer_load_dwordx2 {vr(STT + 4 * r + 2 * h, 2)}, v17, s[44:47], s35 offen offset:{h * 512 + r * 128} sc1')
    for r in range(4):
        for i in range(5):
            a(f's_add_u32 m0, s27, {r * 20480 + i * 1024}')
            a(f's_add_u32 s28, s26, {r * 20480 + i * 1024}')
            a(f'buffer_load_dwordx4 v3, s[8:11], s28 offen sc1 lds')

    def stats():
        e = Asm()
        T = 16
        for r in range(4):
            st = STT + 4 * r
            e(f'v_pk_add_f32 {vr(st, 2)}, {vr(st, 2)}, {vr(st + 2, 2)}')
            xreduce(e, st, st + 2); xreduce(e, st + 1, st + 3)
            e(f'''
            v_mul_f32 v{st}, {fl(1.0 / 640)}, v{st}
            v_mul_f32 v{st + 2}, {fl(1.0 / 640)}, v{st + 1}
            v_fma_f32 v{st + 2}, -v{st}, v{st}, v{st + 2}
            v_max_f32 v{st + 2}, 0, v{st + 2}
            ''')
            bf16r(e, st, st)
            ln_scale(e, st + 2, st + 2, T)
            e(f'v_rcp_f32 v{st + 2}, v{st + 2}')
        return [x.text for x in e.ins]

    def epi(r):
        e = Asm()
        st = STT + 4 * r
        for tl in range(4):
            TT = 24 + 4 * (tl & 1)
            X = ACC + 16 * (r & 1) + 4 * tl
            for h in range(2):
                e(f'v_pk_fma_f32 {vr(X + 2 * h, 2)}, {vr(CS + 4 * tl + 2 * h, 2)}, {vr(st, 2)}, {vr(X + 2 * h, 2)} op_sel_hi:[1,0,1] neg_lo:[1,0,0] neg_hi:[1,0,0]')
            for h in range(2):
                e(f'v_pk_mul_f32 {vr(X + 2 * h, 2)}, {vr(X + 2 * h, 2)}, {vr(st + 2, 2)} op_sel_hi:[1,0]')
            round4(e, X, TT)
            gelu4(e, X, TT)
            o = 80 + 2 * (4 * r + tl)
            e(f'v_cvt_pk_bf16_f32 v{o}, v{X}, v{X + 1}')
            e(f'v_cvt_pk_bf16_f32 v{o + 1}, v{X + 2}, v{X + 3}')
            e(f's_add_u32 s28, s{36 + r}, s{40 + tl}')
            e(f'buffer_store_dwordx2 {vr(o, 2)}, v{[20, 20, 21, 22][tl]}, s[16:19], s28 offen sc1')
        return [x.text for x in e.ins]

    LA = 3

    def rd(n):
        r, s = divmod(n, 20)
        a(f'ds_read_b128 {vr(BF + 4 * (n & 3), 4)}, v{3 if r < 2 else 8} offset:{(r & 1) * 20480 + s * 1024}')
    nst = 0
    a('s_waitcnt vmcnt(15)')
    a('s_barrier')
    a.mst('g3.c0')
    for n in range(LA):
        rd(n)
    el = stats()
    for n in range(80):
        r, s = divmod(n, 20)
        if s == 0 and r > 0:
            for t in el:
                a(t)
                nst += t.startswith('buffer_store')
            el = epi(r - 1)
        m = n + LA
        if m < 80:
            if m % 20 == 0:
                a(f's_waitcnt vmcnt({5 * (3 - m // 20) + nst})')
                a('s_barrier')
            rd(m)
        a(f's_waitcnt lgkmcnt({min(LA, 79 - n)})')
        for tl in range(4):
            ac = vr(ACC + 16 * (r & 1) + 4 * tl, 4)
            a(f'{MF} {ac}, {xr(W3Q[20 * tl + s], 4)}, {vr(BF + 4 * (n & 3), 4)}, {"0" if s == 0 else ac}')
            if s >= 1:
                for _ in range(3):
                    if el:
                        t = el.pop(0); a(t)
                        nst += t.startswith('buffer_store')
    a.mst('g3.mf')
    for t in el + epi(3):
        a(t)
    a.mst('g3.st')
    a(f'''
    s_lshl_b32 s28, s22, 3
    s_add_u32 s28, s28, s23
    s_lshl_b32 s28, s28, 2
    s_add_u32 s41, s28, s3
    ''')
    signal(a, F3_, 41)
    a.mst('g3.sig')
    a('s_barrier')


def g4(a):
    ACC = 32; BF = 112
    NIT = 14; RING = 6; RB4 = 98304
    NPRE = 8
    a('v_add_u32 v5, s77, v3')
    for it in range(NPRE):
        emit_all(a, pf_w4(it, 5))
    a(f'''
    s_lshl_b32 s25, s73, 10
    s_lshl_b32 s29, s22, 2
    s_mul_i32 s27, s3, {RING * 4096}
    v_add_u32 v8, s27, v3
    v_and_b32 v16, 31, v0
    s_lshl_b32 s28, s22, 7
    s_add_u32 s28, s28, {F3_}
    v_lshl_add_u32 v16, v16, 2, s28
    ''')
    for i in range(4):
        a(f's_add_u32 s{39 + i}, s29, s{30 + i}')
        a(f's_mul_i32 s{39 + i}, s{39 + i}, {54 * 1024}')
        a(f's_add_u32 s{39 + i}, s{39 + i}, s25')
    srd_from(a, 8, 4, H3, L * F * 2)
    srd_from(a, 44, 6, 0, SZ_LD)
    a(f'''
    s_lshl_b32 s26, s22, 6
    s_lshl_b32 s28, s3, 4
    s_add_u32 s26, s26, s28
    v_add_u32 v9, s26, v6
    v_mul_u32_u24 v9, 1280, v9
    v_lshl_add_u32 v9, v7, 3, v9
    s_lshl_b32 s26, s24, 5
    v_add_u32 v9, s26, v9
    ''')
    a.mst('g4.prepoll')
    poll(a, 16)
    a.mst('g4.go')
    q = []

    def aload(it):
        for i in range(4):
            a(f's_add_u32 m0, s27, {(it % RING) * 4096 + i * 1024}')
            a(f's_add_u32 s28, s{39 + i}, {it * 1024}')
            a(f'buffer_load_dwordx4 v{5 if it == 13 else 3}, s[8:11], s28 offen sc1 lds')
            q.append(('a', it))

    def wload(it):
        emit_all(a, pf_w4(it, 5))
        q.extend([('w', it)] * 5)

    def wait_for(tag):
        idx = max(i for i, t in enumerate(q) if t == tag)
        a(f's_waitcnt vmcnt({len(q) - 1 - idx})')

    def reads(it):
        for i in range(4):
            a(f'ds_read_b128 {vr(BF + 16 * (it & 1) + 4 * i, 4)}, v8 offset:{(it % RING) * 4096 + i * 1024}')
    for it in range(RING):
        aload(it)
    wait_for(('a', 0))
    a.mst('g4.c0')
    reads(0)
    for it in range(NIT):
        if it + 1 < NIT:
            wait_for(('a', it + 1))
            reads(it + 1)
            a('s_waitcnt lgkmcnt(4)')
        else:
            a('s_waitcnt lgkmcnt(0)')
        if it + RING < NIT:
            aload(it + RING)
        if NPRE + it < NIT:
            wload(NPRE + it)
        if it >= NPRE:
            wait_for(('w', it))
        for i in ([1, 2, 3, 0] if it == NIT - 1 else [0, 1, 2, 3]):
            for j in range(5):
                ac = vr(ACC + 20 * i + 4 * j, 4)
                a(f'{MF} {ac}, {xr(W4Q[5 * it + j], 4)}, {vr(BF + 16 * (it & 1) + 4 * i, 4)}, {"0" if it == 0 else ac}')
    a.mst('g4.mf')
    reduce_write(a, ACC, RB4, 16)
    a('s_waitcnt lgkmcnt(0)')
    a('s_barrier')
    reduce_read(a, ACC, RB4, 16)
    Y = 24; P = 28
    for j in range(5):
        a(f's_waitcnt lgkmcnt({12 - 3 * j})')
        reduce_add(a, ACC, j)
        X = ACC + 4 * j
        round4(a, X, P)
        unpack2(a, Y, X1R + 2 * j); unpack2(a, Y + 2, X1R + 2 * j + 1)
        for h in range(2):
            a(f'v_pk_add_f32 {vr(X + 2 * h, 2)}, {vr(X + 2 * h, 2)}, {vr(Y + 2 * h, 2)}')
        round4(a, X, P)
        unpack2(a, Y, HH + 2 * j); unpack2(a, Y + 2, HH + 2 * j + 1)
        for h in range(2):
            a(f'v_pk_add_f32 {vr(X + 2 * h, 2)}, {vr(X + 2 * h, 2)}, {vr(Y + 2 * h, 2)}')
        a(f'v_cvt_pk_bf16_f32 v{X}, v{X}, v{X + 1}')
        a(f'v_cvt_pk_bf16_f32 v{X + 1}, v{X + 2}, v{X + 3}')
        a(f'buffer_store_dwordx2 {vr(X, 2)}, v9, s[44:47], 0 offen offset:{32 * j}')
    a.mst('g4.st')


def nonce_write(a):
    l = lab('nw')
    a(f'''
    s_or_b32 s28, s2, s3
    s_cmp_lg_u32 s28, 0
    s_cbranch_scc1 {l}
    s_memrealtime s[28:29]
    s_waitcnt lgkmcnt(0)
    s_or_b32 s28, s28, 1
    v_mov_b32 v30, s28
    s_mov_b64 exec, 1
    buffer_store_dword v30, off, s[12:15], 0 sc1
    s_mov_b64 exec, -1
    ''')
    a.label(l)


def gen_gemm_only():
    a = Asm()
    a.label('mk_kernel')
    a('''
    s_cmp_ge_u32 s2, 256
    s_cbranch_scc1 mk_exit
    ''')
    a.mst('start')
    a(f'''
    s_load_dwordx2 s[4:5], s[0:1], {KA['ws']}
    s_load_dwordx4 s[8:11], s[0:1], {KA['out']}
    v_mov_b32 v1, v0
    v_lshrrev_b32 v4, 6, v0
    v_and_b32 v0, 63, v0
    v_readfirstlane_b32 s3, v4
    v_lshlrev_b32 v3, 4, v0
    v_and_b32 v6, 15, v0
    v_lshrrev_b32 v7, 4, v0
    ''')
    setup_common(a)
    a('s_waitcnt lgkmcnt(0)')
    a('s_mov_b32 s6, s8')
    a('s_mov_b32 s7, s9')
    srd_from(a, 12, 10, 0, 256)
    srds_common(a)
    nonce_write(a)
    emit_all(a, pf_w12(1))
    emit_all(a, pf_w12(2))
    a('v_add_u32 v4, s78, v3')
    a('v_add_u32 v5, s79, v3')
    emit_all(a, pf_w3(0, 12, 4, 5))
    a('s_waitcnt vmcnt(37)')
    g1_colsum(a)
    emit_all(a, pf_w3(12, 25, 4, 5))
    get_nonce(a)
    g1(a, False)
    g2(a)
    g3(a)
    g4(a)
    a.mst_end(2)
    a.label('mk_exit')
    a('s_endpgm')
    return a


if __name__ == '__main__':
    out = sys.argv[1] if len(sys.argv) > 1 else 'sequential_preLN__ssm_conv_s4d__mixer_s_mlp__prompt.s'
    if FULL:
        from gen_mk2 import gen_full
        ks = [('mk_kernel', gen_full(), 256, 256, MK_LDS)]
    else:
        from gen2 import gen_k2, K2_LDS
        ks = [('k1_kernel', gen_k1(), K1_GRID, 256, K1_LDS), ('k2_kernel', gen_k2(), D, 256, K2_LDS),
              ('mk_kernel', gen_gemm_only(), 256, 256, MK_LDS)]
    emit(out, ks)
```

```python
import sys, os, math
sys.path.insert(0, 'dbg')
from asmlib import *
from gen import *
from gen2 import unpack2
import gen_mk as M
from gen_mk import MF, lab, signal, poll, emit_all, FA_, FC_

KCS = 4384
UB = 8 * KCS
REG = UB + 6400
RBUF = 3 * REG
TBL = 2624
SUMB = RBUF + 12 * TBL
PTS = 528
PPS = 18944
OOB = 0x40000000

KRAW = 164; DSK = 208; GA = 192; VN = 179


def stsave(a):
    return (getattr(a, 'nst', 0), list(getattr(a, 'stnames', [])))


def strest(a, sv):
    a.nst = sv[0]; a.stnames = list(sv[1])


def nonce_issue(a):
    a(f'buffer_load_dword v{VN}, off, s[12:15], 0 sc1')


def nonce_check(a):
    l = lab('nok')
    a(f'''
    s_cmp_lg_u32 s88, 0
    s_cbranch_scc1 {l}
    v_readfirstlane_b32 s88, v{VN}
    s_cmp_lg_u32 s88, 0
    s_cbranch_scc1 {l}
    ''')
    M.get_nonce(a, VN)
    a.label(l)


def gather_addr(a):
    T = 32
    a(f'''
    v_lshlrev_b32 v4, 3, v1
    v_sub_u32 v4, 2047, v4
    v_cmp_gt_u32 vcc, 239, v1
    ''')
    for e in range(16):
        a(f'v_subrev_u32 v{GA + e}, {e}, v4')
        a(f'v_cvt_f32_i32 v{T + e}, v{GA + e}')
    for e in range(0, 16, 2):
        a(f'v_cvt_pk_bf16_f32 v5, v{T + e}, v{T + e + 1}')
        a(f'v_and_b32 v{T + e}, 0xffff, v5')
        a(f'v_lshrrev_b32 v{T + e + 1}, 16, v5')
    for e in range(15):
        a(f'v_subrev_u32 v{T + e}, 17024, v{T + e}')
        a(f'v_cndmask_b32 v{GA + e}, v{GA + e}, v{T + e}, vcc')
    a('v_cmp_eq_u32 vcc, 255, v1')
    a('v_mov_b32 v5, 644')
    for e in range(8, 15):
        a(f'v_cndmask_b32 v{GA + e}, v{GA + e}, v5, vcc')
    a(f'v_mov_b32 v5, {SUMB}')
    for e in range(15):
        a(f'v_lshl_add_u32 v{GA + e}, v{GA + e}, 2, v5')


def ln_part(a):
    RAW = 8; FF = 48; UU = 28
    ASZ = 4736
    VL = 182; VW = 183; VT = 184; VS = 185
    RW = 116
    srd_from(a, 8, 36, 0, SZ_LD)
    a(f'''
    s_lshl_b32 s16, s64, 4
    s_lshl_b32 s17, s3, 2
    s_add_u32 s18, s16, s17
    v_add_u32 v{VL}, s18, v7
    v_mul_u32_u24 v{VL}, 1280, v{VL}
    v_lshl_add_u32 v{VL}, v6, 4, v{VL}
    ''')
    for c in range(5):
        a(f'buffer_load_dwordx4 {vr(RAW + 4 * c, 4)}, v{VL}, s[8:11], 0 offen offset:{c * 256}')
    l3 = lab('pp3'); l4 = lab('pp4'); lg = lab('ppgo')
    a(f'''
    s_lshl_b32 s66, s64, 2
    s_add_u32 s66, s66, s3
    s_movk_i32 s67, 1280
    s_movk_i32 s68, 20
    s_cmp_lt_u32 s66, 140
    s_cbranch_scc0 {l3}
    s_cmp_lt_u32 s66, 70
    s_cselect_b32 s44, s52, s54
    s_cselect_b32 s45, s53, s55
    s_cselect_b32 s69, 0, {W2P - W1P}
    s_cselect_b32 s70, 0, 70
    s_sub_u32 s66, s66, s70
    s_mov_b32 s46, {D * D * 2}
    s_mul_i32 s70, s66, 205
    s_lshr_b32 s70, s70, 11
    s_mul_i32 s71, s70, 10
    s_branch {lg}
    ''')
    a.label(l3)
    a(f'''
    s_mov_b32 s46, {D * F * 2}
    s_cmp_lt_u32 s66, 329
    s_cbranch_scc0 {l4}
    s_mov_b32 s44, s56
    s_mov_b32 s45, s57
    s_sub_u32 s66, s66, 140
    s_mov_b32 s69, {W3P - W1P}
    s_movk_i32 s67, 3456
    s_mul_i32 s70, s66, 152
    s_lshr_b32 s70, s70, 12
    s_mul_i32 s71, s70, 27
    s_branch {lg}
    ''')
    a.label(l4)
    a(f'''
    s_mov_b32 s44, s58
    s_mov_b32 s45, s59
    s_sub_u32 s66, s66, 329
    s_mov_b32 s69, {W4P - W1P}
    s_movk_i32 s68, 54
    s_mul_i32 s70, s66, 205
    s_lshr_b32 s70, s70, 11
    s_mul_i32 s71, s70, 10
    ''')
    a.label(lg)
    a(f'''
    s_sub_u32 s71, s66, s71
    s_mul_i32 s70, s70, 3
    s_mov_b32 s47, 0x00020000
    v_lshrrev_b32 v4, 3, v0
    v_mul_lo_u32 v4, v4, s67
    v_and_b32 v5, 7, v0
    v_lshl_add_u32 v4, v5, 4, v4
    s_lshl_b32 s72, s70, 5
    s_mul_i32 s72, s72, s67
    s_lshl_b32 s75, s71, 7
    s_add_u32 s72, s72, s75
    s_lshl_b32 s75, s67, 3
    ''')
    for i in range(3):
        for r in range(4):
            a(f'buffer_load_dwordx4 {vr(RW + 16 * i + 4 * r, 4)}, v4, s[44:47], s72 offen')
            if not (i == 2 and r == 3):
                a('s_add_u32 s72, s72, s75')
    PW = 186; PT_ = 188
    a(f'''
    s_lshl_b32 s28, s3, 12
    s_add_u32 s28, s28, {PPS}
    v_bfe_u32 v4, v0, 4, 1
    v_lshlrev_b32 v4, 2, v4
    v_xor_b32 v4, v4, v5
    v_lshlrev_b32 v4, 4, v4
    v_lshrrev_b32 v5, 3, v0
    v_lshl_add_u32 v4, v5, 7, v4
    v_add_u32 v{PW}, s28, v4
    v_xor_b32 v{PW + 1}, 32, v{PW}
    v_bfe_u32 v4, v0, 2, 2
    v_lshl_add_u32 v4, v7, 3, v4
    v_lshlrev_b32 v4, 7, v4
    v_and_b32 v5, 3, v0
    v_lshl_add_u32 v4, v5, 3, v4
    v_add_u32 v4, s28, v4
    v_bfe_u32 v5, v0, 3, 1
    v_lshlrev_b32 v5, 1, v5
    v_and_b32 v98, 1, v7
    v_or_b32 v5, v5, v98
    ''')
    for nt in range(4):
        a(f'v_xor_b32 v98, {nt}, v5')
        a(f'v_lshl_add_u32 v{PT_ + nt}, v98, 5, v4')
    a(f'''
    s_lshl_b32 s72, s71, 2
    s_mul_i32 s72, s72, s68
    s_add_u32 s72, s72, s70
    s_lshl_b32 s72, s72, 10
    s_add_u32 s72, s72, s69
    s_lshl_b32 s75, s68, 10
    ''')
    a(f'''
    v_add_u32 v{VW}, s17, v7
    v_mul_u32_u24 v{VW}, 288, v{VW}
    v_lshl_add_u32 v{VW}, v6, 4, v{VW}
    s_lshr_b32 s19, s3, 1
    s_lshl_b32 s19, s19, 7
    v_add_u32 v{VW}, s19, v{VW}
    v_lshrrev_b32 v{VT}, 2, v6
    v_mul_u32_u24 v{VT}, 288, v{VT}
    v_and_b32 v4, 3, v6
    v_lshl_add_u32 v{VT}, v4, 3, v{VT}
    v_and_b32 v4, 1, v7
    v_mul_u32_u24 v4, {8 * 288 + 128}, v4
    v_add_u32 v{VT}, v{VT}, v4
    v_lshrrev_b32 v4, 1, v7
    v_mul_u32_u24 v4, {ASZ}, v4
    v_add_u32 v{VT}, v{VT}, v4
    s_lshl_b32 s19, s3, 6
    v_add_u32 v{VT}, s19, v{VT}
    s_mul_i32 s76, s64, 40960
    s_lshl_b32 s19, s3, 11
    s_add_u32 s76, s76, s19
    v_lshlrev_b32 v{VS}, 6, v6
    v_lshl_add_u32 v{VS}, v7, 4, v{VS}
    ''')
    srd_from(a, 16, 4, UX, 3 * SZ_LD)
    gather_addr(a)
    T0 = 88; Mn = 90; ACC = 92; S = 94; RS = 96
    a('s_waitcnt vmcnt(12)')
    a.mst('ln.in')
    for k in range(20):
        a(f'v_lshlrev_b32 v{FF + 2 * k}, 16, v{RAW + k}')
        a(f'v_and_b32 v{FF + 2 * k + 1}, 0xffff0000, v{RAW + k}')
    a(f'v_pk_add_f32 {vr(ACC, 2)}, {vr(FF, 2)}, {vr(FF + 2, 2)}')
    a(f'v_pk_add_f32 {vr(T0, 2)}, {vr(FF + 4, 2)}, {vr(FF + 6, 2)}')
    for k in range(4, 20, 2):
        a(f'v_pk_add_f32 {vr(ACC, 2)}, {vr(ACC, 2)}, {vr(FF + 2 * k, 2)}')
        a(f'v_pk_add_f32 {vr(T0, 2)}, {vr(T0, 2)}, {vr(FF + 2 * k + 2, 2)}')
    a(f'v_pk_add_f32 {vr(ACC, 2)}, {vr(ACC, 2)}, {vr(T0, 2)}')
    a(f'v_add_f32 v{S}, v{ACC}, v{ACC + 1}')
    row16_sum(a, S, T0)
    a(f'v_mul_f32 v{Mn}, {fl(1.0 / 640)}, v{S}')
    for k in range(20):
        tt = T0 if k & 1 else RS
        a(f'v_pk_add_f32 {vr(tt, 2)}, {vr(FF + 2 * k, 2)}, {vr(Mn, 2)} op_sel_hi:[1,0] neg_lo:[0,1] neg_hi:[0,1]')
        if k == 0:
            a(f'v_pk_mul_f32 {vr(ACC, 2)}, {vr(tt, 2)}, {vr(tt, 2)}')
        else:
            a(f'v_pk_fma_f32 {vr(ACC, 2)}, {vr(tt, 2)}, {vr(tt, 2)}, {vr(ACC, 2)}')
    a(f'v_add_f32 v{S}, v{ACC}, v{ACC + 1}')
    row16_sum(a, S, T0)
    a(f'v_mul_f32 v{S}, {fl(1.0 / 640)}, v{S}')
    bf16r(a, S, S)
    a(f'v_add_f32 v{S}, {fl(1e-5)}, v{S}')
    bf16r(a, S, S)
    a(f'v_sqrt_f32 v{S}, v{S}')
    bf16r(a, S, S)
    a(f'v_rcp_f32 v{RS}, v{S}')
    bf16r(a, Mn, Mn)
    TT = 100
    for c in range(5):
        ks = range(4 * c, 4 * c + 4)
        for k in ks:
            f = FF + 2 * k
            a(f'v_pk_add_f32 {vr(f, 2)}, {vr(f, 2)}, {vr(Mn, 2)} op_sel_hi:[1,0] neg_lo:[0,1] neg_hi:[0,1]')
        for k in ks:
            f = FF + 2 * k
            a(f'v_cvt_pk_bf16_f32 v{f + 1}, v{f}, v{f + 1}')
        for k in ks:
            f = FF + 2 * k
            a(f'v_lshlrev_b32 v{f}, 16, v{f + 1}')
            a(f'v_and_b32 v{f + 1}, 0xffff0000, v{f + 1}')
        for k in ks:
            f = FF + 2 * k
            a(f'v_pk_mul_f32 {vr(f, 2)}, {vr(f, 2)}, {vr(RS, 2)} op_sel_hi:[1,0]')
        for k in ks:
            f = FF + 2 * k
            a(f'v_cvt_pk_bf16_f32 v{UU + k}, v{f}, v{f + 1}')
        bo = (c & 1) * 2 * ASZ
        a(f'ds_write_b128 v{VW}, {vr(UU + 4 * c, 4)} offset:{bo}')
        a(f'ds_write_b128 v{VW}, {vr(RAW + 4 * c, 4)} offset:{bo + ASZ}')
        a('s_waitcnt lgkmcnt(0)')
        a('s_barrier')
        tb = TT + 8 * (c & 1)
        for ct in range(2):
            a(f'ds_read_b64_tr_b16 {vr(tb + 4 * ct, 2)}, v{VT} offset:{bo + ct * 32}')
            a(f'ds_read_b64_tr_b16 {vr(tb + 4 * ct + 2, 2)}, v{VT} offset:{bo + ct * 32 + 4 * 288}')
        for ct in range(2):
            a(f's_waitcnt lgkmcnt({2 - 2 * ct})')
            a(f'buffer_store_dwordx4 {vr(tb + 4 * ct, 4)}, v{VS}, s[16:19], s76 offen offset:{ct * 1024} sc1')
        if c < 4:
            a('s_add_u32 s76, s76, 8192')
    a.mst('ln.st')
    for i in range(3):
        a(f's_waitcnt vmcnt({10 + 4 * i + 4 * (2 - i)})')
        for r in range(4):
            a(f'ds_write_b128 v{PW + (r & 1)}, {vr(RW + 16 * i + 4 * r, 4)} offset:{r * 1024}')
        a('s_waitcnt lgkmcnt(0)')
        fb = RW + 16 * i
        for nt in range(4):
            a(f'ds_read_b64_tr_b16 {vr(fb + 4 * nt, 2)}, v{PT_ + nt}')
            a(f'ds_read_b64_tr_b16 {vr(fb + 4 * nt + 2, 2)}, v{PT_ + nt} offset:512')
        a(f'''
        s_add_u32 s28, s70, {i}
        s_cmp_lt_u32 s28, s68
        s_cselect_b32 s28, {1024 * i}, {OOB}
        s_add_u32 s28, s28, s72
        ''')
        for nt in range(4):
            a(f's_waitcnt lgkmcnt({6 - 2 * nt})')
            a(f'buffer_store_dwordx4 {vr(fb + 4 * nt, 4)}, v3, s[84:87], s28 offen sc1')
            if nt < 3:
                a('s_add_u32 s28, s28, s75')
    nonce_issue(a)
    a.mst('pp.st')


def precompute(a):
    B = 32
    a(f'''
    s_mul_i32 s28, s3, {PTS}
    s_add_u32 s28, s28, {SUMB}
    v_and_b32 v4, 31, v0
    v_lshl_add_u32 v4, v4, 4, s28
    v_mov_b32 v5, s28
    ''')
    S = range(3)
    for s in S:
        r = KRAW + 5 * s; P = B + 8 * s
        a(f'v_lshlrev_b32 v{P}, 16, v{r}')
        a(f'v_lshlrev_b32 v{P + 1}, 16, v{r + 1}')
        a(f'v_lshlrev_b32 v{P + 2}, 16, v{r + 2}')
        a(f'v_lshlrev_b32 v{P + 3}, 16, v{r + 3}')
        a(f'v_lshlrev_b32 v{P + 4}, 16, v{r + 4}')
        a(f'v_mul_f32 v{P}, {fl(LOG2E)}, v{P}')
        a(f'v_mul_f32 v{P + 4}, {fl(LOG2E)}, v{P + 4}')
    for s in S:
        P = B + 8 * s
        a(f'v_exp_f32 v{P}, v{P}')
        a(f'v_exp_f32 v{P + 4}, v{P + 4}')
        a(f'v_max_f32 v{P + 5}, |v{P + 2}|, |v{P + 3}|')
    for sh in (8, 4, 2, 1):
        for s in S:
            P = B + 8 * s
            a(f'v_max_f32_dpp v{P + 5}, v{P + 5}, v{P + 5} row_ror:{sh} row_mask:0xf bank_mask:0xf')
    for s in S:
        P = B + 8 * s
        a(f'v_cvt_pk_bf16_f32 v{P + 6}, v{P}, v{P + 4}')
        a(f'v_lshlrev_b32 v{P}, 16, v{P + 6}')
        a(f'v_and_b32 v{P + 4}, 0xffff0000, v{P + 6}')
    for s in S:
        P = B + 8 * s
        a(f'v_readlane_b32 s{66 + 2 * s}, v{P + 5}, 0')
        a(f'v_readlane_b32 s{67 + 2 * s}, v{P + 5}, 16')
    for s in S:
        P = B + 8 * s
        a(f'v_mul_f32 v{P}, v{P}, v{P + 4}')
        a(f'v_mul_f32 v{P + 1}, v{P + 1}, v{P + 4}')
        a(f'v_mul_f32 v{P}, {fl(-LOG2E)}, v{P}')
        a(f'v_mul_f32 v{P + 1}, {fl(1.0 / (2 * math.pi))}, v{P + 1}')
    for s in S:
        P = B + 8 * s; x = 66 + 2 * s
        a(f'''
        s_max_u32 s{x}, s{x}, s{x + 1}
        s_lshr_b32 s{x}, s{x}, 23
        s_max_u32 s{x}, s{x}, 13
        s_min_u32 s{x}, s{x}, 254
        s_sub_u32 s{x + 1}, 267, s{x}
        s_lshl_b32 s{x + 1}, s{x + 1}, 23
        s_sub_u32 s{x}, s{x}, 12
        s_lshl_b32 s{x}, s{x}, 23
        v_mul_f32 v{P + 2}, s{x + 1}, v{P + 2}
        v_mul_f32 v{P + 3}, s{x + 1}, v{P + 3}
        v_mul_f32 v{P + 6}, s{x}, v{P + 4}
        ds_write_b128 v4, {vr(P, 4)} offset:{4 * PTS * s}
        ds_write_b32 v5, v{P + 6} offset:{4 * PTS * s + 512}
        ''')


def kgen_loop(a):
    PR = 32; Y = 64; TM = 80; BF = 96; AF = 128; AR = 136; ACC = 152; A4 = 168; FIN = 172; VR = 173; VPT = 174; VTB = 175
    a(f'''
    v_cvt_f32_u32 v{VR}, v6
    s_mul_i32 s28, s63, {4 * PTS}
    s_mul_i32 s29, s3, {PTS}
    s_add_u32 s28, s28, s29
    s_add_u32 s28, s28, {SUMB}
    v_lshlrev_b32 v{VPT}, 7, v7
    v_add_u32 v{VPT}, s28, v{VPT}
    s_lshl_b32 s28, s63, 2
    s_add_u32 s28, s28, s3
    s_mul_i32 s28, s28, {TBL}
    s_add_u32 s28, s28, {RBUF}
    v_lshlrev_b32 v{VTB}, 6, v7
    v_add_u32 v{VTB}, v{VTB}, v6
    v_lshl_add_u32 v{VTB}, v{VTB}, 2, s28
    v_lshlrev_b32 v4, 7, v7
    s_mov_b32 s66, s63
    s_waitcnt lgkmcnt(0)
    ''')
    lp = lab('kgl')
    a.label(lp)
    for p in range(8):
        a(f'ds_read_b128 {vr(PR + 4 * p, 4)}, v{VPT} offset:{16 * p}')
    a(f'v_sub_u32 v5, v{VPT}, v4')
    a(f'ds_read_b32 v{FIN}, v5 offset:512')
    for p in range(8):
        a(f's_waitcnt lgkmcnt({8 - p})')
        a(f'v_pk_mul_f32 {vr(TM + 2 * p, 2)}, {vr(PR + 4 * p, 2)}, {vr(VR - 1, 2)} op_sel:[0,1] op_sel_hi:[1,1]')
        a(f'v_fract_f32 v{TM + 2 * p + 1}, v{TM + 2 * p + 1}')
    for p in range(8):
        a(f'v_exp_f32 v{TM + 2 * p}, v{TM + 2 * p}')
        a(f'v_cos_f32 v{Y + 2 * p}, v{TM + 2 * p + 1}')
        a(f'v_sin_f32 v{Y + 2 * p + 1}, v{TM + 2 * p + 1}')
    for p in range(8):
        a(f'v_pk_mul_f32 {vr(Y + 2 * p, 2)}, {vr(Y + 2 * p, 2)}, {vr(TM + 2 * p, 2)} op_sel_hi:[1,0]')

    def square():
        for p in range(8):
            y = vr(Y + 2 * p, 2)
            a(f'v_pk_mul_f32 {vr(TM + 2 * p, 2)}, {y}, {y} op_sel:[1,1] op_sel_hi:[0,1]')
        for p in range(8):
            y = vr(Y + 2 * p, 2)
            a(f'v_pk_fma_f32 {y}, {y}, {y}, {vr(TM + 2 * p, 2)} op_sel_hi:[0,1,1] neg_lo:[0,0,1]')

    def cvtB(dst):
        for p in range(8):
            a(f'v_cvt_pk_f16_f32 v{dst + p}, v{Y + 2 * p}, -v{Y + 2 * p + 1}')
    for k in range(4):
        cvtB(BF + 8 * k)
        square()
    ls = lab('nosig')
    a(f'''
    s_cmp_eq_u32 s65, 0
    s_cbranch_scc1 {ls}
    s_waitcnt vmcnt(0)
    ''')
    nonce_check(a)
    a('''
    s_lshl_b32 s29, s64, 2
    s_add_u32 s29, s29, s3
    s_mov_b32 s65, 0
    ''')
    signal(a, FA_, 29)
    a.label(ls)
    for k in range(4):
        for p in range(8):
            a(f'v_pk_mul_f32 {vr(AR + 2 * p, 2)}, {vr(PR + 4 * p + 2, 2)}, {vr(Y + 2 * p, 2)} op_sel:[1,1] op_sel_hi:[1,0]')
        for p in range(8):
            a(f'v_pk_fma_f32 {vr(AR + 2 * p, 2)}, {vr(PR + 4 * p + 2, 2)}, {vr(Y + 2 * p, 2)}, {vr(AR + 2 * p, 2)} op_sel_hi:[0,1,1] neg_lo:[0,0,1]')
        for p in range(8):
            a(f'v_cvt_pk_f16_f32 v{AF + p}, v{AR + 2 * p}, v{AR + 2 * p + 1}')
        a(f'v_mfma_f32_16x16x32_f16 {vr(ACC + 4 * k, 4)}, {vr(AF, 4)}, {vr(BF + 8 * k, 4)}, 0')
        a(f'v_mfma_f32_16x16x32_f16 {vr(ACC + 4 * k, 4)}, {vr(AF + 4, 4)}, {vr(BF + 8 * k + 4, 4)}, {vr(ACC + 4 * k, 4)}')
        if k < 3:
            square()
    cvtB(BF)
    a(f'v_mfma_f32_16x16x32_f16 {vr(A4, 4)}, {vr(AF, 4)}, {vr(BF, 4)}, 0')
    a(f'v_mfma_f32_16x16x32_f16 {vr(A4, 4)}, {vr(AF + 4, 4)}, {vr(BF + 4, 4)}, {vr(A4, 4)}')
    a('s_waitcnt lgkmcnt(0)')
    for i in range(0, 16, 2):
        a(f'v_pk_mul_f32 {vr(ACC + i, 2)}, {vr(ACC + i, 2)}, {vr(FIN, 2)} op_sel_hi:[1,0]')
    for ii in range(4):
        a(f'ds_write_b32 v{VTB}, v{ACC + ii} offset:{64 * ii}')
    a(f'v_mul_f32 v{A4}, v{A4}, v{FIN}')
    a('s_mov_b32 exec_lo, 0')
    for k in range(1, 4):
        for ii in range(4):
            a(f'ds_write_b32 v{VTB}, v{ACC + 4 * k + ii} offset:{512 * k + 64 * ii}')
    a('s_mov_b32 exec_hi, 0x100')
    a(f'ds_write_b32 v{VTB}, v{A4} offset:{(640 - 136) * 4}')
    a(f'''
    s_mov_b64 exec, -1
    v_add_u32 v{VPT}, {4 * PTS}, v{VPT}
    v_add_u32 v{VTB}, {4 * TBL}, v{VTB}
    s_add_u32 s66, s66, 1
    s_cmp_lt_u32 s66, 3
    s_cbranch_scc1 {lp}
    ''')


def sum_stage(a):
    ls = lab('sumsk')
    a(f'''
    v_lshlrev_b32 v4, 4, v1
    v_add_u32 v4, {RBUF}, v4
    v_mov_b32 v28, 0
    v_mov_b32 v29, 0
    v_mov_b32 v30, 0
    v_mov_b32 v31, 0
    s_waitcnt lgkmcnt(0)
    s_barrier
    v_cmp_gt_u32 vcc, 161, v1
    s_and_saveexec_b64 s[28:29], vcc
    s_cbranch_execz {ls}
    ''')
    for s in range(3):
        for w in range(4):
            a(f'ds_read_b128 {vr(32 + 16 * s + 4 * w, 4)}, v4 offset:{(4 * s + w) * TBL}')
    for s in range(3):
        b = 32 + 16 * s
        a(f's_waitcnt lgkmcnt({8 - 4 * s + (s > 0) * s})') if False else None
        a(f's_waitcnt lgkmcnt({8 - 3 * s})')
        for h in range(2):
            a(f'v_pk_add_f32 {vr(b + 2 * h, 2)}, {vr(b + 2 * h, 2)}, {vr(b + 4 + 2 * h, 2)}')
            a(f'v_pk_add_f32 {vr(b + 8 + 2 * h, 2)}, {vr(b + 8 + 2 * h, 2)}, {vr(b + 12 + 2 * h, 2)}')
        for h in range(2):
            a(f'v_pk_add_f32 {vr(b + 2 * h, 2)}, {vr(b + 2 * h, 2)}, {vr(b + 8 + 2 * h, 2)}')
        a(f'ds_write_b128 v4, {vr(b, 4)} offset:{(12 + s) * TBL}')
    a.label(ls)
    a('s_mov_b64 exec, -1')
    a(f'''
    v_lshrrev_b32 v4, 2, v0
    v_and_b32 v5, 3, v0
    v_mul_u32_u24 v4, {KCS}, v4
    v_lshl_add_u32 v4, v5, 4, v4
    s_mul_i32 s28, s3, {REG}
    s_add_u32 s29, s28, {257 * 16}
    v_add_u32 v4, s29, v4
    v_mov_b32 v5, {SUMB + 644 * 4}
    v_mul_u32_u24 v8, {TBL}, v0
    v_add_u32 v5, v5, v8
    s_cmp_eq_u32 s3, 3
    s_cselect_b64 vcc, -1, 0
    v_cndmask_b32 v4, v4, v5, vcc
    s_cselect_b32 exec_lo, 7, -1
    s_mov_b32 exec_hi, 0
    ds_write_b128 v4, v[28:31]
    s_mov_b64 exec, -1
    v_cmp_gt_u32 vcc, 80, v1
    s_and_saveexec_b64 s[28:29], vcc
    v_lshlrev_b32 v4, 4, v1
    v_add_u32 v5, {2 * REG}, v4
    ds_write_b128 v4, v[28:31] offset:{UB}
    ds_write_b128 v5, v[28:31] offset:{UB}
    v_add_u32 v4, {REG}, v4
    ds_write_b128 v4, v[28:31] offset:{UB}
    s_mov_b64 exec, -1
    s_waitcnt lgkmcnt(0)
    s_barrier
    ''')


def copies(a):
    G = 32; PKS = 80
    a(f'''
    v_lshlrev_b32 v4, 4, v1
    v_add_u32 v5, {REG}, v4
    v_add_u32 v176, {2 * REG}, v4
    ''')
    va = {0: 4, 1: 5, 2: 176}
    lsk = lab('cp0')

    def rd(s):
        for e in range(15):
            a(f'ds_read_b32 v{G + 16 * s + e}, v{GA + e} offset:{s * TBL}')

    def wr(s):
        g = G + 16 * s; P = PKS + 24 * (s & 1)
        EA = P; EB = P + 6; OA = P + 12; OB = P + 18
        for i in range(6):
            a(f'v_cvt_pk_bf16_f32 v{EA + i}, v{g + 2 * i}, v{g + 2 * i + 1}')
            a(f'v_cvt_pk_bf16_f32 v{EB + i}, v{g + 2 * i + 2}, v{g + 2 * i + 3}')
            a(f'v_cvt_pk_bf16_f32 v{OA + i}, v{g + 2 * i + 1}, v{g + 2 * i + 2}')
            a(f'v_cvt_pk_bf16_f32 v{OB + i}, v{g + 2 * i + 3}, v{g + 2 * i + 4}')
        src = {7: EA, 5: EB, 3: EA + 2, 1: EB + 2, 6: OA, 4: OB, 2: OA + 2, 0: OB + 2}
        for rho in (7, 3, 5, 1, 6, 4, 2, 0):
            a(f'ds_write_b128 v{va[s]}, {vr(src[rho], 4)} offset:{rho * KCS + 16}')
    rd(2)
    a('s_waitcnt lgkmcnt(0)')
    rd(1)
    wr(2)
    a('s_waitcnt lgkmcnt(8)')
    a('s_cmp_lg_u32 s63, 0')
    a(f's_cbranch_scc1 {lsk}')
    rd(0)
    wr(1)
    a('s_waitcnt lgkmcnt(8)')
    wr(0)
    le = lab('cpe')
    a(f's_branch {le}')
    a.label(lsk)
    wr(1)
    a.label(le)


def conv_epi(s, pk):
    e = Asm()
    R = 160; T = 198; T2 = 200; P = 202; O = 204; VST = 196
    U = 8 + 8 * s; X = U + 4; dk = DSK + s
    if pk:
        for i in range(0, 8, 2):
            e(f'v_pk_add_f32 {vr(R + i, 2)}, {vr(R + i, 2)}, {vr(R + 8 + i, 2)}')
            e(f'v_pk_add_f32 {vr(R + 16 + i, 2)}, {vr(R + 16 + i, 2)}, {vr(R + 24 + i, 2)}')
        for i in range(0, 8, 2):
            e(f'v_pk_add_f32 {vr(R + i, 2)}, {vr(R + i, 2)}, {vr(R + 16 + i, 2)}')
    else:
        for i in range(8):
            e(f'v_add_f32 v{R + i}, v{R + i}, v{R + 8 + i}')
            e(f'v_add_f32 v{R + 16 + i}, v{R + 16 + i}, v{R + 24 + i}')
        for i in range(8):
            e(f'v_add_f32 v{R + i}, v{R + i}, v{R + 16 + i}')
    for k in range(4):
        e(f'v_cvt_pk_bf16_f32 v{R + 24 + k}, v{R + 2 * k}, v{R + 2 * k + 1}')
    for k in range(4):
        unpack2(e, R + 8 + 4 * k, U + k)
    for k in range(4):
        unpack2(e, R + 2 * k, R + 24 + k)
    for k in range(4):
        t = R + 8 + 4 * k
        e(f'v_mul_f32 v{t}, v{t}, v{dk}')
        e(f'v_mul_f32 v{t + 1}, v{t + 1}, v{dk}')
    for k in range(4):
        t = R + 8 + 4 * k
        e(f'v_cvt_pk_bf16_f32 v{R + 24 + k}, v{t}, v{t + 1}')
    for k in range(4):
        unpack2(e, R + 8 + 4 * k, R + 24 + k)
    for k in range(4):
        t = R + 8 + 4 * k
        if pk:
            e(f'v_pk_add_f32 {vr(t, 2)}, {vr(t, 2)}, {vr(R + 2 * k, 2)}')
        else:
            e(f'v_add_f32 v{t}, v{t}, v{R + 2 * k}')
            e(f'v_add_f32 v{t + 1}, v{t + 1}, v{R + 2 * k + 1}')
    for k in range(4):
        t = R + 8 + 4 * k
        e(f'v_cvt_pk_bf16_f32 v{R + 24 + k}, v{t}, v{t + 1}')
    for k in range(4):
        unpack2(e, R + 8 + 4 * k, R + 24 + k)
        unpack2(e, R + 10 + 4 * k, X + k)
    for k in range(4):
        t = R + 8 + 4 * k
        if pk:
            e(f'v_pk_add_f32 {vr(t, 2)}, {vr(t, 2)}, {vr(t + 2, 2)}')
        else:
            e(f'v_add_f32 v{t}, v{t}, v{t + 2}')
            e(f'v_add_f32 v{t + 1}, v{t + 1}, v{t + 3}')
    for k in range(4):
        t = R + 8 + 4 * k
        e(f'v_cvt_pk_bf16_f32 v{O + k}, v{t}, v{t + 1}')
    e(f'buffer_store_dwordx4 {vr(O, 4)}, v{VST}, s[16:19], s{67 + s} offen sc1')
    return [x.text for x in e.ins]


FR = [32, 80]; CACC = 128; VA = 192; VB = 193; VP = 194; VQ = 195


def conv_reads(a, dd, nxt=False):
    fb = FR[dd & 1]
    va, vb = (198, 199) if nxt else (VA, VB)
    for g in range(4):
        a(f'ds_read_b128 {vr(fb + 32 + 4 * g, 4)}, v{vb} offset:{(16 * g + 3 - dd) * 80}')
        for bh in range(2):
            a(f'ds_read_b128 {vr(fb + (2 * g + bh) * 4, 4)}, v{va} offset:{(103 - (2 * dd + 32 * g + bh)) * 32}')


def part_reads(a, s):
    off = 0 if s & 1 else RBUF
    a(f'v_add_u32 v4, {off}, v{VQ}')
    for w in range(4):
        a(f'ds_read_b128 {vr(160 + 8 * w, 4)}, v4 offset:{w * 9216}')
        a(f'ds_read_b128 {vr(160 + 8 * w + 4, 4)}, v4 offset:{w * 9216 + 16}')


def conv_inst(a, s, pf):
    el = []
    if s > 0:
        part_reads(a, s - 1)
        el = conv_epi(s - 1, False)
    if s < 2:
        a(f'v_add_u32 v198, {REG}, v{VA}')
        a(f'v_add_u32 v199, {REG}, v{VB}')
    pf = list(pf)
    npf = len(pf); n = 0; done = 0
    span = 72 if s < 2 else 60
    for dd in range(4):
        if dd < 3:
            conv_reads(a, dd + 1)
        elif s < 2:
            conv_reads(a, 0, True)
        if dd > 0:
            a(f's_waitcnt lgkmcnt({12 if (dd < 3 or s < 2) else 0})')
        fb = FR[dd & 1]
        for g in range(4):
            for sb in range(4 - g):
                for bh in range(2):
                    ac = CACC + (2 * (g + sb) + bh) * 4
                    c = '0' if (dd == 0 and g == 0) else vr(ac, 4)
                    a(f'{MF} {vr(ac, 4)}, {vr(fb + (2 * g + bh) * 4, 4)}, {vr(fb + 32 + 4 * sb, 4)}, {c}')
                    n += 1
                    k = 2
                    if pf and done * span < n * npf:
                        a(pf.pop(0)); done += 1; k = 1
                    if dd > 0:
                        for _ in range(k):
                            if el:
                                a(el.pop(0))
    for t in pf + el:
        a(t)
    off = 0 if s & 1 else RBUF
    a(f'v_add_u32 v4, {off}, v{VP}')
    for be in range(4):
        for bh in range(2):
            a(f'ds_write_b128 v4, {vr(CACC + (2 * be + bh) * 4, 4)} offset:{be * 2304 + bh * 64}')
    if s < 2:
        a(f'v_mov_b32 v{VA}, v198')
        a(f'v_mov_b32 v{VB}, v199')
    a('s_waitcnt lgkmcnt(0)')
    a('s_barrier')
    a.mst(f'cv{s}')


def gen_full():
    a = Asm()
    a.label('mk_kernel')
    a('''
    s_cmp_ge_u32 s2, 256
    s_cbranch_scc1 mk_exit
    ''')
    a.mst('start')
    a(f'''
    s_load_dwordx16 s[36:51], s[0:1], 0
    s_load_dwordx8 s[52:59], s[0:1], {KA['w1']}
    s_load_dwordx2 s[4:5], s[0:1], {KA['ws']}
    s_load_dwordx4 s[8:11], s[0:1], {KA['out']}
    v_mov_b32 v1, v0
    v_lshrrev_b32 v4, 6, v0
    v_and_b32 v0, 63, v0
    v_readfirstlane_b32 s3, v4
    v_lshlrev_b32 v3, 4, v0
    v_and_b32 v6, 15, v0
    v_lshrrev_b32 v7, 4, v0
    s_mov_b32 s88, 0
    s_and_b32 s60, s2, 7
    s_lshr_b32 s61, s2, 3
    s_lshr_b32 s63, s61, 4
    s_mov_b32 s65, s63
    s_mul_i32 s62, s60, 80
    s_mul_i32 s28, s61, 3
    s_lshl_b32 s29, s61, 1
    s_add_u32 s29, s29, 15
    s_cmp_lg_u32 s63, 0
    s_cselect_b32 s28, s29, s28
    s_add_u32 s62, s62, s28
    s_sub_u32 s64, s61, 16
    s_lshl_b32 s64, s64, 3
    s_add_u32 s64, s64, s60
    v_and_b32 v4, 31, v0
    v_lshlrev_b32 v4, 1, v4
    s_lshl_b32 s28, s62, 8
    s_lshl_b32 s29, s3, 6
    s_add_u32 s28, s28, s29
    v_add_u32 v4, s28, v4
    s_lshl_b32 s28, s62, 1
    v_mov_b32 v5, s28
    s_waitcnt lgkmcnt(0)
    ''')
    for s in range(3):
        for i in range(4):
            a(f'global_load_ushort v{KRAW + 5 * s + i}, v4, s[{38 + 2 * i}:{39 + 2 * i}] offset:{256 * s}')
        a(f'global_load_ushort v{KRAW + 5 * s + 4}, v5, s[46:47] offset:{2 * s}')
    for s in range(3):
        a(f'global_load_ushort v{DSK + s}, v5, s[48:49] offset:{2 * s}')
    a('s_mov_b32 s6, s8')
    a('s_mov_b32 s7, s9')
    srd_from(a, 12, 10, 0, 256)
    M.srds_common(a)
    M.nonce_write(a)
    lln = lab('ln'); lkg = lab('kg')
    a('s_cmp_lg_u32 s63, 0')
    a(f's_cbranch_scc1 {lln}')
    M.setup_common(a)
    srd_from(a, 16, 4, UX, 3 * SZ_LD)
    gather_addr(a)
    a('s_waitcnt vmcnt(0)')
    nonce_issue(a)
    sv = stsave(a)
    for i in range(3):
        a.mst('x')
    strest(a, sv)
    a(f's_branch {lkg}')
    a.label(lln)
    ln_part(a)
    M.setup_common(a)
    a.label(lkg)
    a.mst('kg.go')
    precompute(a)
    kgen_loop(a)
    a.mst('kg.end')
    sum_stage(a)
    a('s_waitcnt vmcnt(0)')
    nonce_check(a)
    a(f'''
    v_and_b32 v4, 31, v0
    s_lshl_b32 s28, s3, 9
    s_add_u32 s28, s28, {FA_}
    v_lshl_add_u32 v4, v4, 4, s28
    v_lshrrev_b32 v178, 1, v1
    v_mul_u32_u24 v178, 40960, v178
    v_and_b32 v5, 1, v1
    v_lshl_add_u32 v178, v5, 4, v178
    s_lshl_b32 s29, s62, 6
    ''')
    a.mst('fa.pre')
    poll(a, 4, 28, 4)
    a.mst('fa.go')
    for s in (2, 1, 0):
        a(f'buffer_load_dwordx4 {vr(8 + 8 * s, 4)}, v178, s[16:19], s29 offen offset:{64 * s} sc1')
    for s in (0, 1, 2):
        a(f'buffer_load_dwordx4 {vr(12 + 8 * s, 4)}, v178, s[16:19], s29 offen offset:{64 * s + 32} sc1')
    copies(a)
    a(f'''
    v_lshrrev_b32 v4, 2, v1
    v_and_b32 v5, 3, v1
    v_mul_u32_u24 v176, 80, v4
    v_lshl_add_u32 v176, v5, 4, v176
    v_mul_u32_u24 v{VQ}, 144, v4
    v_lshl_add_u32 v{VQ}, v5, 5, v{VQ}
    v_and_b32 v4, 7, v0
    v_mul_u32_u24 v{VA}, {KCS}, v4
    v_bfe_u32 v4, v0, 3, 1
    v_sub_u32 v4, v7, v4
    v_lshl_add_u32 v{VA}, v4, 4, v{VA}
    s_mul_i32 s29, s63, {REG}
    s_lshl_b32 s28, s3, 8
    s_sub_u32 s28, {256 * 16 - 103 * 32}, s28
    s_add_u32 s28, s28, s29
    v_add_u32 v{VA}, s28, v{VA}
    v_mul_u32_u24 v{VB}, 80, v6
    v_lshl_add_u32 v{VB}, v7, 4, v{VB}
    s_mul_i32 s28, s3, 320
    s_sub_u32 s28, {UB + 13 * 80}, s28
    s_add_u32 s28, s28, s29
    v_add_u32 v{VB}, s28, v{VB}
    v_mul_u32_u24 v{VP}, 144, v6
    v_lshl_add_u32 v{VP}, v7, 4, v{VP}
    s_mul_i32 s28, s3, 9216
    v_add_u32 v{VP}, s28, v{VP}
    v_lshrrev_b32 v196, 3, v1
    v_mul_u32_u24 v196, 0x14000, v196
    v_and_b32 v4, 7, v1
    v_lshl_add_u32 v196, v4, 4, v196
    s_lshl_b32 s68, s62, 7
    s_add_u32 s68, s68, {HT - UX + 128}
    s_add_u32 s69, s68, 128
    s_sub_u32 s67, s68, 128
    s_cmp_lg_u32 s63, 0
    s_cselect_b32 s67, {OOB}, s67
    v_add_u32 v4, {REG}, v176
    v_add_u32 v5, {2 * REG}, v176
    ''')
    for s in range(3):
        a(f'v_lshlrev_b32 v{DSK + s}, 16, v{DSK + s}')
    for s in (2, 1, 0):
        a(f's_waitcnt vmcnt({3 + s})')
        a(f'ds_write_b128 v{[176, 4, 5][s]}, {vr(8 + 8 * s, 4)} offset:{UB + 16 * 80}')
    a('s_waitcnt vmcnt(0) lgkmcnt(0)')
    a('s_barrier')
    a.mst('cv.go')
    conv_reads(a, 0)
    lb_ = lab('cvB'); l2 = lab('cv2')
    a('s_cmp_lg_u32 s63, 0')
    a(f's_cbranch_scc1 {l2}')
    a('s_waitcnt lgkmcnt(0)')
    sv = stsave(a)
    conv_inst(a, 0, M.pf_w12(1))
    strest(a, sv)
    a(f's_branch {lb_}')
    a.label(l2)
    emit_all(a, M.pf_w12(1))
    a('s_waitcnt lgkmcnt(0)')
    a.mst('cv0')
    a.label(lb_)
    conv_inst(a, 1, M.pf_w12(2))
    a('v_add_u32 v200, s78, v3')
    a('v_add_u32 v201, s79, v3')
    conv_inst(a, 2, M.pf_w3(0, 25, 200, 201))
    part_reads(a, 2)
    a(f'''
    s_lshl_b32 s29, s3, 8
    s_lshl_b32 s28, s60, 5
    s_add_u32 s29, s29, s28
    s_add_u32 s29, s29, s61
    s_waitcnt lgkmcnt(0)
    ''')
    for t in conv_epi(2, True):
        a(t)
    a.mst('cv.st')
    signal(a, FC_, 29)
    a.mst('cv.sig')
    a('s_barrier')
    M.fm_lane(a, 20, 19, 18)
    M.g1_colsum(a)
    M.g1(a, True)
    M.g2(a)
    M.g3(a)
    M.g4(a)
    a.mst_end(2)
    a.label('mk_exit')
    a('s_endpgm')
    return a
```

```python
import sys, os, math
sys.path.insert(0, 'dbg')
from asmlib import *
from gen import *
from gen2 import unpack2
import gen_mk as M
from gen_mk import MF, lab, signal, poll, emit_all, FA_, FC_

CPF = int(os.environ.get('CPF', '0'))
KCS = 4384
UB = 8 * KCS
REG = UB + 6400
RBUF = 3 * REG
TBL = 2624
SUMB = RBUF + 12 * TBL
PTS = 528
PPS = 18944
OOB = 0x40000000

KRAW = 164; DSK = 208; GA = 192; VN = 179


def stsave(a):
    return (getattr(a, 'nst', 0), list(getattr(a, 'stnames', [])))


def strest(a, sv):
    a.nst = sv[0]; a.stnames = list(sv[1])


def nonce_issue(a):
    a(f'buffer_load_dword v{VN}, off, s[12:15], 0 sc1')


def nonce_check(a):
    l = lab('nok')
    a(f'''
    s_cmp_lg_u32 s88, 0
    s_cbranch_scc1 {l}
    v_readfirstlane_b32 s88, v{VN}
    s_cmp_lg_u32 s88, 0
    s_cbranch_scc1 {l}
    ''')
    M.get_nonce(a, VN)
    a.label(l)


def gather_addr(a):
    T = 32
    a(f'''
    v_lshlrev_b32 v4, 3, v1
    v_sub_u32 v4, 2047, v4
    v_cmp_gt_u32 vcc, 239, v1
    ''')
    for e in range(16):
        a(f'v_subrev_u32 v{GA + e}, {e}, v4')
        a(f'v_cvt_f32_i32 v{T + e}, v{GA + e}')
    for e in range(0, 16, 2):
        a(f'v_cvt_pk_bf16_f32 v5, v{T + e}, v{T + e + 1}')
        a(f'v_and_b32 v{T + e}, 0xffff, v5')
        a(f'v_lshrrev_b32 v{T + e + 1}, 16, v5')
    for e in range(15):
        a(f'v_subrev_u32 v{T + e}, 17024, v{T + e}')
        a(f'v_cndmask_b32 v{GA + e}, v{GA + e}, v{T + e}, vcc')
    a('v_cmp_eq_u32 vcc, 255, v1')
    a('v_mov_b32 v5, 644')
    for e in range(8, 15):
        a(f'v_cndmask_b32 v{GA + e}, v{GA + e}, v5, vcc')
    a(f'v_mov_b32 v5, {SUMB}')
    for e in range(15):
        a(f'v_lshl_add_u32 v{GA + e}, v{GA + e}, 2, v5')


def ln_part(a):
    RAW = 8; FF = 48; UU = 28
    ASZ = 4736
    VL = 182; VW = 183; VT = 184; VS = 185
    RW = 116
    srd_from(a, 8, 36, 0, SZ_LD)
    a(f'''
    s_lshl_b32 s16, s64, 4
    s_lshl_b32 s17, s3, 2
    s_add_u32 s18, s16, s17
    v_add_u32 v{VL}, s18, v7
    v_mul_u32_u24 v{VL}, 1280, v{VL}
    v_lshl_add_u32 v{VL}, v6, 4, v{VL}
    ''')
    for c in range(5):
        a(f'buffer_load_dwordx4 {vr(RAW + 4 * c, 4)}, v{VL}, s[8:11], 0 offen offset:{c * 256}')
    l3 = lab('pp3'); l4 = lab('pp4'); lg = lab('ppgo')
    a(f'''
    s_lshl_b32 s66, s64, 2
    s_add_u32 s66, s66, s3
    s_movk_i32 s67, 1280
    s_movk_i32 s68, 20
    s_cmp_lt_u32 s66, 140
    s_cbranch_scc0 {l3}
    s_cmp_lt_u32 s66, 70
    s_cselect_b32 s44, s52, s54
    s_cselect_b32 s45, s53, s55
    s_cselect_b32 s69, 0, {W2P - W1P}
    s_cselect_b32 s70, 0, 70
    s_sub_u32 s66, s66, s70
    s_mov_b32 s46, {D * D * 2}
    s_mul_i32 s70, s66, 205
    s_lshr_b32 s70, s70, 11
    s_mul_i32 s71, s70, 10
    s_branch {lg}
    ''')
    a.label(l3)
    a(f'''
    s_mov_b32 s46, {D * F * 2}
    s_cmp_lt_u32 s66, 329
    s_cbranch_scc0 {l4}
    s_mov_b32 s44, s56
    s_mov_b32 s45, s57
    s_sub_u32 s66, s66, 140
    s_mov_b32 s69, {W3P - W1P}
    s_movk_i32 s67, 3456
    s_mul_i32 s70, s66, 152
    s_lshr_b32 s70, s70, 12
    s_mul_i32 s71, s70, 27
    s_branch {lg}
    ''')
    a.label(l4)
    a(f'''
    s_mov_b32 s44, s58
    s_mov_b32 s45, s59
    s_sub_u32 s66, s66, 329
    s_mov_b32 s69, {W4P - W1P}
    s_movk_i32 s68, 54
    s_mul_i32 s70, s66, 205
    s_lshr_b32 s70, s70, 11
    s_mul_i32 s71, s70, 10
    ''')
    a.label(lg)
    a(f'''
    s_sub_u32 s71, s66, s71
    s_mul_i32 s70, s70, 3
    s_mov_b32 s47, 0x00020000
    v_lshrrev_b32 v4, 3, v0
    v_mul_lo_u32 v4, v4, s67
    v_and_b32 v5, 7, v0
    v_lshl_add_u32 v4, v5, 4, v4
    s_lshl_b32 s72, s70, 5
    s_mul_i32 s72, s72, s67
    s_lshl_b32 s75, s71, 7
    s_add_u32 s72, s72, s75
    s_lshl_b32 s75, s67, 3
    ''')
    for i in range(3):
        for r in range(4):
            a(f'buffer_load_dwordx4 {vr(RW + 16 * i + 4 * r, 4)}, v4, s[44:47], s72 offen')
            if not (i == 2 and r == 3):
                a('s_add_u32 s72, s72, s75')
    PW = 186; PT_ = 188
    a(f'''
    s_lshl_b32 s28, s3, 12
    s_add_u32 s28, s28, {PPS}
    v_bfe_u32 v4, v0, 4, 1
    v_lshlrev_b32 v4, 2, v4
    v_xor_b32 v4, v4, v5
    v_lshlrev_b32 v4, 4, v4
    v_lshrrev_b32 v5, 3, v0
    v_lshl_add_u32 v4, v5, 7, v4
    v_add_u32 v{PW}, s28, v4
    v_xor_b32 v{PW + 1}, 32, v{PW}
    v_bfe_u32 v4, v0, 2, 2
    v_lshl_add_u32 v4, v7, 3, v4
    v_lshlrev_b32 v4, 7, v4
    v_and_b32 v5, 3, v0
    v_lshl_add_u32 v4, v5, 3, v4
    v_add_u32 v4, s28, v4
    v_bfe_u32 v5, v0, 3, 1
    v_lshlrev_b32 v5, 1, v5
    v_and_b32 v98, 1, v7
    v_or_b32 v5, v5, v98
    ''')
    for nt in range(4):
        a(f'v_xor_b32 v98, {nt}, v5')
        a(f'v_lshl_add_u32 v{PT_ + nt}, v98, 5, v4')
    a(f'''
    s_lshl_b32 s72, s71, 2
    s_mul_i32 s72, s72, s68
    s_add_u32 s72, s72, s70
    s_lshl_b32 s72, s72, 10
    s_add_u32 s72, s72, s69
    s_lshl_b32 s75, s68, 10
    ''')
    a(f'''
    v_add_u32 v{VW}, s17, v7
    v_mul_u32_u24 v{VW}, 288, v{VW}
    v_lshl_add_u32 v{VW}, v6, 4, v{VW}
    s_lshr_b32 s19, s3, 1
    s_lshl_b32 s19, s19, 7
    v_add_u32 v{VW}, s19, v{VW}
    v_lshrrev_b32 v{VT}, 2, v6
    v_mul_u32_u24 v{VT}, 288, v{VT}
    v_and_b32 v4, 3, v6
    v_lshl_add_u32 v{VT}, v4, 3, v{VT}
    v_and_b32 v4, 1, v7
    v_mul_u32_u24 v4, {8 * 288 + 128}, v4
    v_add_u32 v{VT}, v{VT}, v4
    v_lshrrev_b32 v4, 1, v7
    v_mul_u32_u24 v4, {ASZ}, v4
    v_add_u32 v{VT}, v{VT}, v4
    s_lshl_b32 s19, s3, 6
    v_add_u32 v{VT}, s19, v{VT}
    s_mul_i32 s76, s64, 40960
    s_lshl_b32 s19, s3, 11
    s_add_u32 s76, s76, s19
    v_lshlrev_b32 v{VS}, 6, v6
    v_lshl_add_u32 v{VS}, v7, 4, v{VS}
    ''')
    srd_from(a, 16, 4, UX, 3 * SZ_LD)
    gather_addr(a)
    T0 = 88; Mn = 90; ACC = 92; S = 94; RS = 96
    a('s_waitcnt vmcnt(12)')
    a.mst('ln.in')
    for k in range(20):
        a(f'v_lshlrev_b32 v{FF + 2 * k}, 16, v{RAW + k}')
        a(f'v_and_b32 v{FF + 2 * k + 1}, 0xffff0000, v{RAW + k}')
    a(f'v_pk_add_f32 {vr(ACC, 2)}, {vr(FF, 2)}, {vr(FF + 2, 2)}')
    a(f'v_pk_add_f32 {vr(T0, 2)}, {vr(FF + 4, 2)}, {vr(FF + 6, 2)}')
    for k in range(4, 20, 2):
        a(f'v_pk_add_f32 {vr(ACC, 2)}, {vr(ACC, 2)}, {vr(FF + 2 * k, 2)}')
        a(f'v_pk_add_f32 {vr(T0, 2)}, {vr(T0, 2)}, {vr(FF + 2 * k + 2, 2)}')
    a(f'v_pk_add_f32 {vr(ACC, 2)}, {vr(ACC, 2)}, {vr(T0, 2)}')
    a(f'v_add_f32 v{S}, v{ACC}, v{ACC + 1}')
    row16_sum(a, S, T0)
    a(f'v_mul_f32 v{Mn}, {fl(1.0 / 640)}, v{S}')
    for k in range(20):
        tt = T0 if k & 1 else RS
        a(f'v_pk_add_f32 {vr(tt, 2)}, {vr(FF + 2 * k, 2)}, {vr(Mn, 2)} op_sel_hi:[1,0] neg_lo:[0,1] neg_hi:[0,1]')
        if k == 0:
            a(f'v_pk_mul_f32 {vr(ACC, 2)}, {vr(tt, 2)}, {vr(tt, 2)}')
        else:
            a(f'v_pk_fma_f32 {vr(ACC, 2)}, {vr(tt, 2)}, {vr(tt, 2)}, {vr(ACC, 2)}')
    a(f'v_add_f32 v{S}, v{ACC}, v{ACC + 1}')
    row16_sum(a, S, T0)
    a(f'v_mul_f32 v{S}, {fl(1.0 / 640)}, v{S}')
    bf16r(a, S, S)
    a(f'v_add_f32 v{S}, {fl(1e-5)}, v{S}')
    bf16r(a, S, S)
    a(f'v_sqrt_f32 v{S}, v{S}')
    bf16r(a, S, S)
    a(f'v_rcp_f32 v{RS}, v{S}')
    bf16r(a, Mn, Mn)
    TT = 100
    for c in range(5):
        ks = range(4 * c, 4 * c + 4)
        for k in ks:
            f = FF + 2 * k
            a(f'v_pk_add_f32 {vr(f, 2)}, {vr(f, 2)}, {vr(Mn, 2)} op_sel_hi:[1,0] neg_lo:[0,1] neg_hi:[0,1]')
        for k in ks:
            f = FF + 2 * k
            a(f'v_cvt_pk_bf16_f32 v{f + 1}, v{f}, v{f + 1}')
        for k in ks:
            f = FF + 2 * k
            a(f'v_lshlrev_b32 v{f}, 16, v{f + 1}')
            a(f'v_and_b32 v{f + 1}, 0xffff0000, v{f + 1}')
        for k in ks:
            f = FF + 2 * k
            a(f'v_pk_mul_f32 {vr(f, 2)}, {vr(f, 2)}, {vr(RS, 2)} op_sel_hi:[1,0]')
        for k in ks:
            f = FF + 2 * k
            a(f'v_cvt_pk_bf16_f32 v{UU + k}, v{f}, v{f + 1}')
        bo = (c & 1) * 2 * ASZ
        a(f'ds_write_b128 v{VW}, {vr(UU + 4 * c, 4)} offset:{bo}')
        a(f'ds_write_b128 v{VW}, {vr(RAW + 4 * c, 4)} offset:{bo + ASZ}')
        a('s_waitcnt lgkmcnt(0)')
        a('s_barrier')
        tb = TT + 8 * (c & 1)
        for ct in range(2):
            a(f'ds_read_b64_tr_b16 {vr(tb + 4 * ct, 2)}, v{VT} offset:{bo + ct * 32}')
            a(f'ds_read_b64_tr_b16 {vr(tb + 4 * ct + 2, 2)}, v{VT} offset:{bo + ct * 32 + 4 * 288}')
        for ct in range(2):
            a(f's_waitcnt lgkmcnt({2 - 2 * ct})')
            a(f'buffer_store_dwordx4 {vr(tb + 4 * ct, 4)}, v{VS}, s[16:19], s76 offen offset:{ct * 1024} sc1')
        if c < 4:
            a('s_add_u32 s76, s76, 8192')
    a.mst('ln.st')
    for i in range(3):
        a(f's_waitcnt vmcnt({10 + 4 * i + 4 * (2 - i)})')
        for r in range(4):
            a(f'ds_write_b128 v{PW + (r & 1)}, {vr(RW + 16 * i + 4 * r, 4)} offset:{r * 1024}')
        a('s_waitcnt lgkmcnt(0)')
        fb = RW + 16 * i
        for nt in range(4):
            a(f'ds_read_b64_tr_b16 {vr(fb + 4 * nt, 2)}, v{PT_ + nt}')
            a(f'ds_read_b64_tr_b16 {vr(fb + 4 * nt + 2, 2)}, v{PT_ + nt} offset:512')
        a(f'''
        s_add_u32 s28, s70, {i}
        s_cmp_lt_u32 s28, s68
        s_cselect_b32 s28, {1024 * i}, {OOB}
        s_add_u32 s28, s28, s72
        ''')
        for nt in range(4):
            a(f's_waitcnt lgkmcnt({6 - 2 * nt})')
            a(f'buffer_store_dwordx4 {vr(fb + 4 * nt, 4)}, v3, s[84:87], s28 offen sc1')
            if nt < 3:
                a('s_add_u32 s28, s28, s75')
    nonce_issue(a)
    a.mst('pp.st')


def precompute(a):
    B = 32
    a(f'''
    s_mul_i32 s28, s3, {PTS}
    s_add_u32 s28, s28, {SUMB}
    v_and_b32 v4, 31, v0
    v_lshl_add_u32 v4, v4, 4, s28
    v_mov_b32 v5, s28
    ''')
    S = range(3)
    for s in S:
        r = KRAW + 5 * s; P = B + 8 * s
        a(f'v_lshlrev_b32 v{P}, 16, v{r}')
        a(f'v_lshlrev_b32 v{P + 1}, 16, v{r + 1}')
        a(f'v_lshlrev_b32 v{P + 2}, 16, v{r + 2}')
        a(f'v_lshlrev_b32 v{P + 3}, 16, v{r + 3}')
        a(f'v_lshlrev_b32 v{P + 4}, 16, v{r + 4}')
        a(f'v_mul_f32 v{P}, {fl(LOG2E)}, v{P}')
        a(f'v_mul_f32 v{P + 4}, {fl(LOG2E)}, v{P + 4}')
    for s in S:
        P = B + 8 * s
        a(f'v_exp_f32 v{P}, v{P}')
        a(f'v_exp_f32 v{P + 4}, v{P + 4}')
        a(f'v_max_f32 v{P + 5}, |v{P + 2}|, |v{P + 3}|')
    for sh in (8, 4, 2, 1):
        for s in S:
            P = B + 8 * s
            a(f'v_max_f32_dpp v{P + 5}, v{P + 5}, v{P + 5} row_ror:{sh} row_mask:0xf bank_mask:0xf')
    for s in S:
        P = B + 8 * s
        a(f'v_cvt_pk_bf16_f32 v{P + 6}, v{P}, v{P + 4}')
        a(f'v_lshlrev_b32 v{P}, 16, v{P + 6}')
        a(f'v_and_b32 v{P + 4}, 0xffff0000, v{P + 6}')
    for s in S:
        P = B + 8 * s
        a(f'v_readlane_b32 s{66 + 2 * s}, v{P + 5}, 0')
        a(f'v_readlane_b32 s{67 + 2 * s}, v{P + 5}, 16')
    for s in S:
        P = B + 8 * s
        a(f'v_mul_f32 v{P}, v{P}, v{P + 4}')
        a(f'v_mul_f32 v{P + 1}, v{P + 1}, v{P + 4}')
        a(f'v_mul_f32 v{P}, {fl(-LOG2E)}, v{P}')
        a(f'v_mul_f32 v{P + 1}, {fl(1.0 / (2 * math.pi))}, v{P + 1}')
    for s in S:
        P = B + 8 * s; x = 66 + 2 * s
        a(f'''
        s_max_u32 s{x}, s{x}, s{x + 1}
        s_lshr_b32 s{x}, s{x}, 23
        s_max_u32 s{x}, s{x}, 13
        s_min_u32 s{x}, s{x}, 254
        s_sub_u32 s{x + 1}, 267, s{x}
        s_lshl_b32 s{x + 1}, s{x + 1}, 23
        s_sub_u32 s{x}, s{x}, 12
        s_lshl_b32 s{x}, s{x}, 23
        v_mul_f32 v{P + 2}, s{x + 1}, v{P + 2}
        v_mul_f32 v{P + 3}, s{x + 1}, v{P + 3}
        v_mul_f32 v{P + 6}, s{x}, v{P + 4}
        ds_write_b128 v4, {vr(P, 4)} offset:{4 * PTS * s}
        ds_write_b32 v5, v{P + 6} offset:{4 * PTS * s + 512}
        ''')


def kgen_loop(a):
    PR = 32; Y = 64; TM = 80; BF = 96; AF = 128; AR = 136; ACC = 152; A4 = 168; FIN = 172; VR = 173; VPT = 174; VTB = 175
    a(f'''
    v_cvt_f32_u32 v{VR}, v6
    s_mul_i32 s28, s63, {4 * PTS}
    s_mul_i32 s29, s3, {PTS}
    s_add_u32 s28, s28, s29
    s_add_u32 s28, s28, {SUMB}
    v_lshlrev_b32 v{VPT}, 7, v7
    v_add_u32 v{VPT}, s28, v{VPT}
    s_lshl_b32 s28, s63, 2
    s_add_u32 s28, s28, s3
    s_mul_i32 s28, s28, {TBL}
    s_add_u32 s28, s28, {RBUF}
    v_lshlrev_b32 v{VTB}, 6, v7
    v_add_u32 v{VTB}, v{VTB}, v6
    v_lshl_add_u32 v{VTB}, v{VTB}, 2, s28
    v_lshlrev_b32 v4, 7, v7
    s_mov_b32 s66, s63
    s_waitcnt lgkmcnt(0)
    ''')
    lp = lab('kgl')
    a.label(lp)
    for p in range(8):
        a(f'ds_read_b128 {vr(PR + 4 * p, 4)}, v{VPT} offset:{16 * p}')
    a(f'v_sub_u32 v5, v{VPT}, v4')
    a(f'ds_read_b32 v{FIN}, v5 offset:512')
    for p in range(8):
        a(f's_waitcnt lgkmcnt({8 - p})')
        a(f'v_pk_mul_f32 {vr(TM + 2 * p, 2)}, {vr(PR + 4 * p, 2)}, {vr(VR - 1, 2)} op_sel:[0,1] op_sel_hi:[1,1]')
        a(f'v_fract_f32 v{TM + 2 * p + 1}, v{TM + 2 * p + 1}')
    for p in range(8):
        a(f'v_exp_f32 v{TM + 2 * p}, v{TM + 2 * p}')
        a(f'v_cos_f32 v{Y + 2 * p}, v{TM + 2 * p + 1}')
        a(f'v_sin_f32 v{Y + 2 * p + 1}, v{TM + 2 * p + 1}')
    for p in range(8):
        a(f'v_pk_mul_f32 {vr(Y + 2 * p, 2)}, {vr(Y + 2 * p, 2)}, {vr(TM + 2 * p, 2)} op_sel_hi:[1,0]')

    def square():
        for p in range(8):
            y = vr(Y + 2 * p, 2)
            a(f'v_pk_mul_f32 {vr(TM + 2 * p, 2)}, {y}, {y} op_sel:[1,1] op_sel_hi:[0,1]')
        for p in range(8):
            y = vr(Y + 2 * p, 2)
            a(f'v_pk_fma_f32 {y}, {y}, {y}, {vr(TM + 2 * p, 2)} op_sel_hi:[0,1,1] neg_lo:[0,0,1]')

    def cvtB(dst):
        for p in range(8):
            a(f'v_cvt_pk_f16_f32 v{dst + p}, v{Y + 2 * p}, -v{Y + 2 * p + 1}')
    for k in range(4):
        cvtB(BF + 8 * k)
        square()
    ls = lab('nosig')
    a(f'''
    s_cmp_eq_u32 s65, 0
    s_cbranch_scc1 {ls}
    s_waitcnt vmcnt(0)
    ''')
    nonce_check(a)
    a('''
    s_lshl_b32 s29, s64, 2
    s_add_u32 s29, s29, s3
    s_mov_b32 s65, 0
    ''')
    signal(a, FA_, 29)
    a.label(ls)
    for k in range(4):
        for p in range(8):
            a(f'v_pk_mul_f32 {vr(AR + 2 * p, 2)}, {vr(PR + 4 * p + 2, 2)}, {vr(Y + 2 * p, 2)} op_sel:[1,1] op_sel_hi:[1,0]')
        for p in range(8):
            a(f'v_pk_fma_f32 {vr(AR + 2 * p, 2)}, {vr(PR + 4 * p + 2, 2)}, {vr(Y + 2 * p, 2)}, {vr(AR + 2 * p, 2)} op_sel_hi:[0,1,1] neg_lo:[0,0,1]')
        for p in range(8):
            a(f'v_cvt_pk_f16_f32 v{AF + p}, v{AR + 2 * p}, v{AR + 2 * p + 1}')
        a(f'v_mfma_f32_16x16x32_f16 {vr(ACC + 4 * k, 4)}, {vr(AF, 4)}, {vr(BF + 8 * k, 4)}, 0')
        a(f'v_mfma_f32_16x16x32_f16 {vr(ACC + 4 * k, 4)}, {vr(AF + 4, 4)}, {vr(BF + 8 * k + 4, 4)}, {vr(ACC + 4 * k, 4)}')
        if k < 3:
            square()
    cvtB(BF)
    a(f'v_mfma_f32_16x16x32_f16 {vr(A4, 4)}, {vr(AF, 4)}, {vr(BF, 4)}, 0')
    a(f'v_mfma_f32_16x16x32_f16 {vr(A4, 4)}, {vr(AF + 4, 4)}, {vr(BF + 4, 4)}, {vr(A4, 4)}')
    a('s_waitcnt lgkmcnt(0)')
    for i in range(0, 16, 2):
        a(f'v_pk_mul_f32 {vr(ACC + i, 2)}, {vr(ACC + i, 2)}, {vr(FIN, 2)} op_sel_hi:[1,0]')
    for ii in range(4):
        a(f'ds_write_b32 v{VTB}, v{ACC + ii} offset:{64 * ii}')
    a(f'v_mul_f32 v{A4}, v{A4}, v{FIN}')
    a('s_mov_b32 exec_lo, 0')
    for k in range(1, 4):
        for ii in range(4):
            a(f'ds_write_b32 v{VTB}, v{ACC + 4 * k + ii} offset:{512 * k + 64 * ii}')
    a('s_mov_b32 exec_hi, 0x100')
    a(f'ds_write_b32 v{VTB}, v{A4} offset:{(640 - 136) * 4}')
    a(f'''
    s_mov_b64 exec, -1
    v_add_u32 v{VPT}, {4 * PTS}, v{VPT}
    v_add_u32 v{VTB}, {4 * TBL}, v{VTB}
    s_add_u32 s66, s66, 1
    s_cmp_lt_u32 s66, 3
    s_cbranch_scc1 {lp}
    ''')


def sum_stage(a):
    ls = lab('sumsk')
    a(f'''
    v_lshlrev_b32 v4, 4, v1
    v_add_u32 v4, {RBUF}, v4
    v_mov_b32 v28, 0
    v_mov_b32 v29, 0
    v_mov_b32 v30, 0
    v_mov_b32 v31, 0
    s_waitcnt lgkmcnt(0)
    s_barrier
    v_cmp_gt_u32 vcc, 161, v1
    s_and_saveexec_b64 s[28:29], vcc
    s_cbranch_execz {ls}
    ''')
    for s in range(3):
        for w in range(4):
            a(f'ds_read_b128 {vr(32 + 16 * s + 4 * w, 4)}, v4 offset:{(4 * s + w) * TBL}')
    for s in range(3):
        b = 32 + 16 * s
        a(f's_waitcnt lgkmcnt({8 - 4 * s + (s > 0) * s})') if False else None
        a(f's_waitcnt lgkmcnt({8 - 3 * s})')
        for h in range(2):
            a(f'v_pk_add_f32 {vr(b + 2 * h, 2)}, {vr(b + 2 * h, 2)}, {vr(b + 4 + 2 * h, 2)}')
            a(f'v_pk_add_f32 {vr(b + 8 + 2 * h, 2)}, {vr(b + 8 + 2 * h, 2)}, {vr(b + 12 + 2 * h, 2)}')
        for h in range(2):
            a(f'v_pk_add_f32 {vr(b + 2 * h, 2)}, {vr(b + 2 * h, 2)}, {vr(b + 8 + 2 * h, 2)}')
        a(f'ds_write_b128 v4, {vr(b, 4)} offset:{(12 + s) * TBL}')
    a.label(ls)
    a('s_mov_b64 exec, -1')
    a(f'''
    v_lshrrev_b32 v4, 2, v0
    v_and_b32 v5, 3, v0
    v_mul_u32_u24 v4, {KCS}, v4
    v_lshl_add_u32 v4, v5, 4, v4
    s_mul_i32 s28, s3, {REG}
    s_add_u32 s29, s28, {257 * 16}
    v_add_u32 v4, s29, v4
    v_mov_b32 v5, {SUMB + 644 * 4}
    v_mul_u32_u24 v8, {TBL}, v0
    v_add_u32 v5, v5, v8
    s_cmp_eq_u32 s3, 3
    s_cselect_b64 vcc, -1, 0
    v_cndmask_b32 v4, v4, v5, vcc
    s_cselect_b32 exec_lo, 7, -1
    s_mov_b32 exec_hi, 0
    ds_write_b128 v4, v[28:31]
    s_mov_b64 exec, -1
    v_cmp_gt_u32 vcc, 80, v1
    s_and_saveexec_b64 s[28:29], vcc
    v_lshlrev_b32 v4, 4, v1
    v_add_u32 v5, {2 * REG}, v4
    ds_write_b128 v4, v[28:31] offset:{UB}
    ds_write_b128 v5, v[28:31] offset:{UB}
    v_add_u32 v4, {REG}, v4
    ds_write_b128 v4, v[28:31] offset:{UB}
    s_mov_b64 exec, -1
    s_waitcnt lgkmcnt(0)
    s_barrier
    ''')


def copies(a):
    G = 32; PKS = 80
    a(f'''
    v_lshlrev_b32 v4, 4, v1
    v_add_u32 v5, {REG}, v4
    v_add_u32 v176, {2 * REG}, v4
    ''')
    va = {0: 4, 1: 5, 2: 176}
    lsk = lab('cp0')

    def rd(s):
        for e in range(15):
            a(f'ds_read_b32 v{G + 16 * s + e}, v{GA + e} offset:{s * TBL}')

    def wr(s):
        g = G + 16 * s; P = PKS + 24 * (s & 1)
        EA = P; EB = P + 6; OA = P + 12; OB = P + 18
        for i in range(6):
            a(f'v_cvt_pk_bf16_f32 v{EA + i}, v{g + 2 * i}, v{g + 2 * i + 1}')
            a(f'v_cvt_pk_bf16_f32 v{EB + i}, v{g + 2 * i + 2}, v{g + 2 * i + 3}')
            a(f'v_cvt_pk_bf16_f32 v{OA + i}, v{g + 2 * i + 1}, v{g + 2 * i + 2}')
            a(f'v_cvt_pk_bf16_f32 v{OB + i}, v{g + 2 * i + 3}, v{g + 2 * i + 4}')
        src = {7: EA, 5: EB, 3: EA + 2, 1: EB + 2, 6: OA, 4: OB, 2: OA + 2, 0: OB + 2}
        for rho in (7, 3, 5, 1, 6, 4, 2, 0):
            a(f'ds_write_b128 v{va[s]}, {vr(src[rho], 4)} offset:{rho * KCS + 16}')
    rd(2)
    a('s_waitcnt lgkmcnt(0)')
    rd(1)
    wr(2)
    a('s_waitcnt lgkmcnt(8)')
    a('s_cmp_lg_u32 s63, 0')
    a(f's_cbranch_scc1 {lsk}')
    rd(0)
    wr(1)
    a('s_waitcnt lgkmcnt(8)')
    wr(0)
    le = lab('cpe')
    a(f's_branch {le}')
    a.label(lsk)
    wr(1)
    a.label(le)


def conv_epi(s, pk):
    e = Asm()
    R = 160; T = 198; T2 = 200; P = 202; O = 204; VST = 196
    U = 8 + 8 * s; X = U + 4; dk = DSK + s
    if pk:
        for i in range(0, 8, 2):
            e(f'v_pk_add_f32 {vr(R + i, 2)}, {vr(R + i, 2)}, {vr(R + 8 + i, 2)}')
            e(f'v_pk_add_f32 {vr(R + 16 + i, 2)}, {vr(R + 16 + i, 2)}, {vr(R + 24 + i, 2)}')
        for i in range(0, 8, 2):
            e(f'v_pk_add_f32 {vr(R + i, 2)}, {vr(R + i, 2)}, {vr(R + 16 + i, 2)}')
    else:
        for i in range(8):
            e(f'v_add_f32 v{R + i}, v{R + i}, v{R + 8 + i}')
            e(f'v_add_f32 v{R + 16 + i}, v{R + 16 + i}, v{R + 24 + i}')
        for i in range(8):
            e(f'v_add_f32 v{R + i}, v{R + i}, v{R + 16 + i}')
    for k in range(4):
        e(f'v_cvt_pk_bf16_f32 v{R + 24 + k}, v{R + 2 * k}, v{R + 2 * k + 1}')
    for k in range(4):
        unpack2(e, R + 8 + 4 * k, U + k)
    for k in range(4):
        unpack2(e, R + 2 * k, R + 24 + k)
    for k in range(4):
        t = R + 8 + 4 * k
        e(f'v_mul_f32 v{t}, v{t}, v{dk}')
        e(f'v_mul_f32 v{t + 1}, v{t + 1}, v{dk}')
    for k in range(4):
        t = R + 8 + 4 * k
        e(f'v_cvt_pk_bf16_f32 v{R + 24 + k}, v{t}, v{t + 1}')
    for k in range(4):
        unpack2(e, R + 8 + 4 * k, R + 24 + k)
    for k in range(4):
        t = R + 8 + 4 * k
        if pk:
            e(f'v_pk_add_f32 {vr(t, 2)}, {vr(t, 2)}, {vr(R + 2 * k, 2)}')
        else:
            e(f'v_add_f32 v{t}, v{t}, v{R + 2 * k}')
            e(f'v_add_f32 v{t + 1}, v{t + 1}, v{R + 2 * k + 1}')
    for k in range(4):
        t = R + 8 + 4 * k
        e(f'v_cvt_pk_bf16_f32 v{R + 24 + k}, v{t}, v{t + 1}')
    for k in range(4):
        unpack2(e, R + 8 + 4 * k, R + 24 + k)
        unpack2(e, R + 10 + 4 * k, X + k)
    for k in range(4):
        t = R + 8 + 4 * k
        if pk:
            e(f'v_pk_add_f32 {vr(t, 2)}, {vr(t, 2)}, {vr(t + 2, 2)}')
        else:
            e(f'v_add_f32 v{t}, v{t}, v{t + 2}')
            e(f'v_add_f32 v{t + 1}, v{t + 1}, v{t + 3}')
    for k in range(4):
        t = R + 8 + 4 * k
        e(f'v_cvt_pk_bf16_f32 v{O + k}, v{t}, v{t + 1}')
    e(f'buffer_store_dwordx4 {vr(O, 4)}, v{VST}, s[16:19], s{67 + s} offen sc1')
    return [x.text for x in e.ins]


FR = [32, 80]; CACC = 128; VA = 192; VB = 193; VP = 194; VQ = 195


def conv_reads(a, dd, nxt=False):
    fb = FR[dd & 1]
    va, vb = (198, 199) if nxt else (VA, VB)
    for g in range(4):
        a(f'ds_read_b128 {vr(fb + 32 + 4 * g, 4)}, v{vb} offset:{(16 * g + 3 - dd) * 80}')
        for bh in range(2):
            a(f'ds_read_b128 {vr(fb + (2 * g + bh) * 4, 4)}, v{va} offset:{(103 - (2 * dd + 32 * g + bh)) * 32}')


def part_reads(a, s):
    off = 0 if s & 1 else RBUF
    a(f'v_add_u32 v4, {off}, v{VQ}')
    for w in range(4):
        a(f'ds_read_b128 {vr(160 + 8 * w, 4)}, v4 offset:{w * 9216}')
        a(f'ds_read_b128 {vr(160 + 8 * w + 4, 4)}, v4 offset:{w * 9216 + 16}')


def conv_inst(a, s, pf):
    el = []
    if s > 0:
        part_reads(a, s - 1)
        el = conv_epi(s - 1, False)
    if s < 2:
        a(f'v_add_u32 v198, {REG}, v{VA}')
        a(f'v_add_u32 v199, {REG}, v{VB}')
    pf = list(pf)
    npf = len(pf); n = 0; done = 0
    span = 72 if s < 2 else 60
    for dd in range(4):
        if dd < 3:
            conv_reads(a, dd + 1)
        elif s < 2:
            conv_reads(a, 0, True)
        if dd > 0:
            a(f's_waitcnt lgkmcnt({12 if (dd < 3 or s < 2) else 0})')
        fb = FR[dd & 1]
        for g in range(4):
            for sb in range(4 - g):
                for bh in range(2):
                    ac = CACC + (2 * (g + sb) + bh) * 4
                    c = '0' if (dd == 0 and g == 0) else vr(ac, 4)
                    a(f'{MF} {vr(ac, 4)}, {vr(fb + (2 * g + bh) * 4, 4)}, {vr(fb + 32 + 4 * sb, 4)}, {c}')
                    n += 1
                    k = 2
                    if pf and done * span < n * npf:
                        a(pf.pop(0)); done += 1; k = 1
                    if dd > 0:
                        for _ in range(k):
                            if el:
                                a(el.pop(0))
    for t in pf + el:
        a(t)
    off = 0 if s & 1 else RBUF
    a(f'v_add_u32 v4, {off}, v{VP}')
    for be in range(4):
        for bh in range(2):
            a(f'ds_write_b128 v4, {vr(CACC + (2 * be + bh) * 4, 4)} offset:{be * 2304 + bh * 64}')
    if s < 2:
        a(f'v_mov_b32 v{VA}, v198')
        a(f'v_mov_b32 v{VB}, v199')
    a('s_waitcnt lgkmcnt(0)')
    a('s_barrier')
    a.mst(f'cv{s}')


def gen_full():
    a = Asm()
    a.label('mk_kernel')
    a('''
    s_cmp_ge_u32 s2, 256
    s_cbranch_scc1 mk_exit
    ''')
    a.mst('start')
    a(f'''
    s_load_dwordx16 s[36:51], s[0:1], 0
    s_load_dwordx8 s[52:59], s[0:1], {KA['w1']}
    s_load_dwordx2 s[4:5], s[0:1], {KA['ws']}
    s_load_dwordx4 s[8:11], s[0:1], {KA['out']}
    v_mov_b32 v1, v0
    v_lshrrev_b32 v4, 6, v0
    v_and_b32 v0, 63, v0
    v_readfirstlane_b32 s3, v4
    v_lshlrev_b32 v3, 4, v0
    v_and_b32 v6, 15, v0
    v_lshrrev_b32 v7, 4, v0
    s_mov_b32 s88, 0
    s_and_b32 s60, s2, 7
    s_lshr_b32 s61, s2, 3
    s_lshr_b32 s63, s61, 4
    s_mov_b32 s65, s63
    s_mul_i32 s62, s60, 80
    s_mul_i32 s28, s61, 3
    s_lshl_b32 s29, s61, 1
    s_add_u32 s29, s29, 15
    s_cmp_lg_u32 s63, 0
    s_cselect_b32 s28, s29, s28
    s_add_u32 s62, s62, s28
    s_sub_u32 s64, s61, 16
    s_lshl_b32 s64, s64, 3
    s_add_u32 s64, s64, s60
    v_and_b32 v4, 31, v0
    v_lshlrev_b32 v4, 1, v4
    s_lshl_b32 s28, s62, 8
    s_lshl_b32 s29, s3, 6
    s_add_u32 s28, s28, s29
    v_add_u32 v4, s28, v4
    s_lshl_b32 s28, s62, 1
    v_mov_b32 v5, s28
    ''')
    a('s_waitcnt lgkmcnt(0)')
    for s in range(3):
        for i in range(4):
            a(f'global_load_ushort v{KRAW + 5 * s + i}, v4, s[{38 + 2 * i}:{39 + 2 * i}] offset:{256 * s}')
        a(f'global_load_ushort v{KRAW + 5 * s + 4}, v5, s[46:47] offset:{2 * s}')
    for s in range(3):
        a(f'global_load_ushort v{DSK + s}, v5, s[48:49] offset:{2 * s}')
    a('s_mov_b32 s6, s8')
    a('s_mov_b32 s7, s9')
    srd_from(a, 12, 10, 0, 256)
    M.srds_common(a)
    M.nonce_write(a)
    lln = lab('ln'); lkg = lab('kg')
    a('s_cmp_lg_u32 s63, 0')
    a(f's_cbranch_scc1 {lln}')
    if CPF:
        a('''
        s_getpc_b64 s[30:31]
        mk_pcref:
        s_sub_u32 s30, s30, mk_pcref-mk_kernel
        s_subb_u32 s31, s31, 0
        s_lshl_b32 s28, s61, 12
        v_lshl_add_u32 v8, v1, 4, s28
        v_min_u32 v8, mk_exit-mk_kernel-16, v8
        global_load_dwordx4 v[252:255], v8, s[30:31]
        ''')
    M.setup_common(a)
    srd_from(a, 16, 4, UX, 3 * SZ_LD)
    gather_addr(a)
    a(f's_waitcnt vmcnt({CPF})')
    nonce_issue(a)
    sv = stsave(a)
    for i in range(3):
        a.mst('x')
    strest(a, sv)
    a(f's_branch {lkg}')
    a.label(lln)
    ln_part(a)
    M.setup_common(a)
    a.label(lkg)
    a.mst('kg.go')
    precompute(a)
    kgen_loop(a)
    a.mst('kg.end')
    sum_stage(a)
    a('s_waitcnt vmcnt(0)')
    nonce_check(a)
    a(f'''
    v_and_b32 v4, 31, v0
    s_lshl_b32 s28, s3, 9
    s_add_u32 s28, s28, {FA_}
    v_lshl_add_u32 v4, v4, 4, s28
    v_lshrrev_b32 v178, 1, v1
    v_mul_u32_u24 v178, 40960, v178
    v_and_b32 v5, 1, v1
    v_lshl_add_u32 v178, v5, 4, v178
    s_lshl_b32 s29, s62, 6
    ''')
    a.mst('fa.pre')
    poll(a, 4, 28, 4)
    a.mst('fa.go')
    for s in (2, 1, 0):
        a(f'buffer_load_dwordx4 {vr(8 + 8 * s, 4)}, v178, s[16:19], s29 offen offset:{64 * s} sc1')
    for s in (0, 1, 2):
        a(f'buffer_load_dwordx4 {vr(12 + 8 * s, 4)}, v178, s[16:19], s29 offen offset:{64 * s + 32} sc1')
    copies(a)
    a(f'''
    v_lshrrev_b32 v4, 2, v1
    v_and_b32 v5, 3, v1
    v_mul_u32_u24 v176, 80, v4
    v_lshl_add_u32 v176, v5, 4, v176
    v_mul_u32_u24 v{VQ}, 144, v4
    v_lshl_add_u32 v{VQ}, v5, 5, v{VQ}
    v_and_b32 v4, 7, v0
    v_mul_u32_u24 v{VA}, {KCS}, v4
    v_bfe_u32 v4, v0, 3, 1
    v_sub_u32 v4, v7, v4
    v_lshl_add_u32 v{VA}, v4, 4, v{VA}
    s_mul_i32 s29, s63, {REG}
    s_lshl_b32 s28, s3, 8
    s_sub_u32 s28, {256 * 16 - 103 * 32}, s28
    s_add_u32 s28, s28, s29
    v_add_u32 v{VA}, s28, v{VA}
    v_mul_u32_u24 v{VB}, 80, v6
    v_lshl_add_u32 v{VB}, v7, 4, v{VB}
    s_mul_i32 s28, s3, 320
    s_sub_u32 s28, {UB + 13 * 80}, s28
    s_add_u32 s28, s28, s29
    v_add_u32 v{VB}, s28, v{VB}
    v_mul_u32_u24 v{VP}, 144, v6
    v_lshl_add_u32 v{VP}, v7, 4, v{VP}
    s_mul_i32 s28, s3, 9216
    v_add_u32 v{VP}, s28, v{VP}
    v_lshrrev_b32 v196, 3, v1
    v_mul_u32_u24 v196, 0x14000, v196
    v_and_b32 v4, 7, v1
    v_lshl_add_u32 v196, v4, 4, v196
    s_lshl_b32 s68, s62, 7
    s_add_u32 s68, s68, {HT - UX + 128}
    s_add_u32 s69, s68, 128
    s_sub_u32 s67, s68, 128
    s_cmp_lg_u32 s63, 0
    s_cselect_b32 s67, {OOB}, s67
    v_add_u32 v4, {REG}, v176
    v_add_u32 v5, {2 * REG}, v176
    ''')
    for s in range(3):
        a(f'v_lshlrev_b32 v{DSK + s}, 16, v{DSK + s}')
    for s in (2, 1, 0):
        a(f's_waitcnt vmcnt({3 + s})')
        a(f'ds_write_b128 v{[176, 4, 5][s]}, {vr(8 + 8 * s, 4)} offset:{UB + 16 * 80}')
    a('s_waitcnt vmcnt(0) lgkmcnt(0)')
    a('s_barrier')
    a.mst('cv.go')
    conv_reads(a, 0)
    lb_ = lab('cvB'); l2 = lab('cv2')
    a('s_cmp_lg_u32 s63, 0')
    a(f's_cbranch_scc1 {l2}')
    a('s_waitcnt lgkmcnt(0)')
    sv = stsave(a)
    conv_inst(a, 0, M.pf_w12(1))
    strest(a, sv)
    a(f's_branch {lb_}')
    a.label(l2)
    emit_all(a, M.pf_w12(1))
    a('s_waitcnt lgkmcnt(0)')
    a.mst('cv0')
    a.label(lb_)
    conv_inst(a, 1, M.pf_w12(2))
    a('v_add_u32 v200, s78, v3')
    a('v_add_u32 v201, s79, v3')
    conv_inst(a, 2, M.pf_w3(0, 25, 200, 201))
    part_reads(a, 2)
    a(f'''
    s_lshl_b32 s29, s3, 8
    s_lshl_b32 s28, s60, 5
    s_add_u32 s29, s29, s28
    s_add_u32 s29, s29, s61
    s_waitcnt lgkmcnt(0)
    ''')
    for t in conv_epi(2, True):
        a(t)
    a.mst('cv.st')
    signal(a, FC_, 29)
    a.mst('cv.sig')
    a('s_barrier')
    M.fm_lane(a, 20, 19, 18)
    M.g1_colsum(a)
    M.g1(a, True)
    M.g2(a)
    M.g3(a)
    M.g4(a)
    a.mst_end(2)
    if os.environ.get('DSTAMP'):
        sel = {8: (1, 'start kg.go kg.end fa.go cv.go cv.sig g1.go g1.sig g2.go g2.sig g3.go g3.sig g4.go end'.split()),
               255: (8, 'start ln.in ln.st pp.st kg.end fa.go cv.go cv.sig g1.go g1.sig g2.go g2.sig g3.go g3.sig g4.go end'.split())}
        for wg, (k0, nm) in sel.items():
            l = lab('dst')
            a(f'''
            s_cmp_lg_u32 s3, 0
            s_cbranch_scc1 {l}
            s_cmp_lg_u32 s2, {wg}
            s_cbranch_scc1 {l}
            ''')
            for k in range(0, len(nm), 2):
                a(f'''
                v_readlane_b32 s40, v2, {a.stnames.index(nm[k])}
                v_readlane_b32 s41, v2, {a.stnames.index(nm[k + 1])}
                s_sub_u32 s40, s40, s88
                s_sub_u32 s41, s41, s88
                s_and_b32 s40, s40, 0xffff
                s_lshl_b32 s41, s41, 16
                s_or_b32 s40, s40, s41
                v_writelane_b32 v5, s40, {k0 + k // 2}
                ''')
            m = ((1 << (len(nm) // 2)) - 1) << k0
            a(f'''
            s_mov_b64 exec, {m}
            buffer_store_dword v5, v4, s[12:15], 0 offen
            s_mov_b64 exec, -1
            ''')
            a.label(l)
    a.label('mk_exit')
    a('s_endpgm')
    return a
```
